```python
import torch

def _softmax(x, axis=-1):
    return torch.softmax(x, dim=axis)
def _gelu(x):
    return torch.nn.functional.gelu(x, approximate="tanh")
def _silu(x):
    return torch.nn.functional.silu(x)
def _sigmoid(x):
    return torch.sigmoid(x)
def _layernorm(x, axis=-1, eps=1e-5):
    m = x.mean(dim=axis, keepdim=True)
    v = x.var(dim=axis, keepdim=True, unbiased=False)
    return (x - m) / torch.sqrt(v + eps)
def _scatter_add(tgt, idx, src, axis=0):
    return tgt.clone().index_add_(axis, idx, src)
def _segment_sum(src, seg, n):
    out = torch.zeros((n,) + src.shape[1:], dtype=src.dtype)
    return out.index_add_(0, seg, src)
def _pad(x, pw):
    flat = tuple(v for pair in reversed(pw) for v in pair)
    return torch.nn.functional.pad(x, flat)

kernel_name = 'gated_mix__ssm_conv_h3__dense_activation_mish__prompt'

def setup_inputs():

    _w = (lambda a: (lambda t: t.to(torch.bfloat16) if t.is_floating_point() else t)(torch.as_tensor(a)))
    def _A_setup():
        B, S, D = 1, 2048, 512
        ks = 4
        return {
            "q": _w((lambda *s: torch.randn(*s, dtype=torch.bfloat16) * 0.05)(B, S, D)),
            "k": _w((lambda *s: torch.randn(*s, dtype=torch.bfloat16) * 0.2)(B, S, D)),
            "v": _w((lambda *s: torch.randn(*s, dtype=torch.bfloat16) * 0.2)(B, S, D)),
            "shift_k": _w((lambda *s: torch.randn(*s, dtype=torch.bfloat16) * 0.2)(D, ks) * 0.5),
            "ssm_k": _w((lambda *s: torch.randn(*s, dtype=torch.bfloat16) * 0.8)(D, S) * (1.0 / S ** 0.5)),
            "ssm_D": _w((lambda *s: torch.randn(*s, dtype=torch.bfloat16) * 0.2)(D)),
        }
    _A_in = _A_setup()

    def _B_setup():
        B, S, D, F = 1, 2048, 512, 1376
        return {
            "x": _w((lambda *s: torch.randn(*s, dtype=torch.bfloat16) * 0.05)(B, S, D)),
            "w1": _w((lambda *s: torch.randn(*s, dtype=torch.bfloat16) * 3.2)(D, F) * (D ** -0.5)),
            "b1": _w((lambda *s: torch.randn(*s, dtype=torch.bfloat16) * 0.05)(F)),
            "w2": _w((lambda *s: torch.randn(*s, dtype=torch.bfloat16) * 0.05)(F, D) * (F ** -0.5)),
        }
    _B_in = _B_setup()

    return {
        "A_q": _A_in["q"],
        "A_k": _A_in["k"],
        "A_v": _A_in["v"],
        "A_shift_k": _A_in["shift_k"],
        "A_ssm_k": _A_in["ssm_k"],
        "A_ssm_D": _A_in["ssm_D"],
        "B_x": _B_in["x"],
        "B_w1": _B_in["w1"],
        "B_b1": _B_in["b1"],
        "B_w2": _B_in["w2"],
        "gate_w": _w((lambda *s: torch.randn(*s, dtype=torch.bfloat16) * 0.05)(512) * 16.0),
    }

def reference(A_q, A_k, A_v, A_shift_k, A_ssm_k, A_ssm_D, B_x, B_w1, B_b1, B_w2, gate_w):
    def _A_ref(q, k, v, shift_k, ssm_k, ssm_D):
        B, S, D = q.shape
        ks = shift_k.shape[-1]
        k_pad = _pad(k, ((0, 0), (ks - 1, 0), (0, 0)))
        k_shift = torch.zeros_like(k)
        for t in range(ks):
            k_shift = k_shift + k_pad[:, t:t + S, :] * shift_k[:, ks - 1 - t][None, None, :]
        kv = k_shift * v
        L = 2 * S
        kv_pad = _pad(kv, ((0, 0), (0, S), (0, 0)))
        kf_pad = _pad(ssm_k, ((0, 0), (0, S)))
        kv_f = (lambda x, axes=(-2,-1): torch.fft.rfft2(x.float(), dim=axes))(kv_pad[:, None, :, :], axes=(1, 2))
        kf_f = (lambda x, axes=(-2,-1): torch.fft.rfft2(x.float(), dim=axes))(kf_pad[:, None, :], axes=(1, 2))
        kf_f = (lambda x, *d: x.permute(*d))(kf_f, 1, 2, 0)
        y_f = kv_f * kf_f[None, :, :, :]
        y = (lambda x, s, axes=(-2,-1): torch.fft.irfft2(x, s=s, dim=axes).to(torch.bfloat16))(y_f, (1, L), axes=(1, 2))[:, 0, :S, :]
        y = y + kv * ssm_D[None, None, :]
        return q * y

    def _B_ref(x, w1, b1, w2):
        h = torch.einsum("bsd,df->bsf", x, w1) + b1
        sp = torch.log1p(torch.exp(-torch.abs(h))) + torch.where(h > 0, h, torch.zeros_like(h))
        act = h * torch.tanh(sp)
        return torch.einsum("bsf,fd->bsd", act, w2)

    x = A_q
    g = _sigmoid((x * gate_w).sum(-1, keepdims=True))
    a = _A_ref(x, A_k, A_v, A_shift_k, A_ssm_k, A_ssm_D)
    b = _B_ref(x, B_w1, B_b1, B_w2)
    return g * a + (1 - g) * b
```

```python
class Asm:
    def __init__(self):
        self.L = []
    def __call__(self, s):
        self.L.append("    " + s)
    def lab(self, s):
        self.L.append(s + ":")
    def cmt(self, s):
        self.L.append("    ; " + s)
    def raw(self, s):
        self.L.append(s)
    def text(self):
        return "\n".join(self.L) + "\n"

KA = dict(q=0, k=8, v=16, shift_k=24, ssm_k=32, ssm_D=40, B_x=48, w1=56, b1=64, w2=72, gate_w=80, out=88, dbg=96, ws=104)

S, D, F, FP = 2048, 512, 1376, 1408
WS_KVT = 0
WS_Y2T = 2 << 20
WS_G   = 4 << 20
WS_W1T = 5 << 20
WS_W2T = 7 << 20
WS_ACT = 9 << 20
WS_BYTES = 268435456

def vr(a, n=1):
    return "v%d" % a if n == 1 else "v[%d:%d]" % (a, a + n - 1)
def sr(a, n=1):
    return "s%d" % a if n == 1 else "s[%d:%d]" % (a, a + n - 1)

def load_ptr(a, sreg, name):
    a("s_load_dwordx2 %s, s[0:1], %d" % (sr(sreg, 2), KA[name]))

def make_srd(a, sdst, sptr, nbytes):
    a("s_mov_b32 s%d, s%d" % (sdst, sptr))
    a("s_mov_b32 s%d, s%d" % (sdst + 1, sptr + 1))
    a("s_mov_b32 s%d, 0x%x" % (sdst + 2, nbytes))
    a("s_mov_b32 s%d, 0x00020000" % (sdst + 3))

def kernel_header(a, name):
    a.raw(".globl %s" % name)
    a.raw(".p2align 8")
    a.raw(".type %s,@function" % name)
    a.lab(name)

def kernel_desc(name, vgpr, sgpr=96):
    acc = (vgpr + 3) // 4 * 4
    return """.amdhsa_kernel %s
  .amdhsa_next_free_vgpr %d
  .amdhsa_next_free_sgpr %d
  .amdhsa_accum_offset %d
  .amdhsa_group_segment_fixed_size 0
  .amdhsa_kernarg_size 112
  .amdhsa_user_sgpr_count 2
  .amdhsa_user_sgpr_kernarg_segment_ptr 1
  .amdhsa_system_sgpr_workgroup_id_x 1
  .amdhsa_float_denorm_mode_32 3
  .amdhsa_float_denorm_mode_16_64 3
.end_amdhsa_kernel
""" % (name, vgpr, sgpr, acc)

def round2(a, x0, x1, tmp):
    a("v_cvt_pk_bf16_f32 v%d, v%d, v%d" % (tmp, x0, x1))
    a("v_lshlrev_b32 v%d, 16, v%d" % (x0, tmp))
    a("v_and_b32 v%d, 0xffff0000, v%d" % (x1, tmp))
```

```python
from common import *

NA_WG, NB_WG, NC_WG = 128, 128, 88
K0_WGS = NA_WG + NB_WG + NC_WG

def gen_k0(a):
    name = "prep_kernel"
    kernel_header(a, name)
    a("v_readfirstlane_b32 s3, v0")
    a("s_lshr_b32 s3, s3, 6")
    a("v_and_b32 v1, 63, v0                     ; lane")
    load_ptr(a, 4, "ws")
    a("s_cmp_ge_u32 s2, %d" % K0_WGS)
    a("s_cbranch_scc1 L_k0_done")
    a("s_cmp_ge_u32 s2, %d" % (NA_WG + NB_WG))
    a("s_cbranch_scc1 L_k0_jobC")
    a("s_cmp_ge_u32 s2, %d" % NA_WG)
    a("s_cbranch_scc1 L_k0_jobB")

    load_ptr(a, 6, "k"); load_ptr(a, 8, "v"); load_ptr(a, 10, "shift_k")
    a("s_lshl_b32 s20, s2, 2")
    a("s_add_u32 s20, s20, s3                   ; t")
    a("s_lshr_b32 s21, s20, 3                   ; stile")
    a("s_and_b32 s22, s20, 7                    ; ctile")
    a("v_and_b32 v2, 7, v1                      ; cg")
    a("v_lshrrev_b32 v3, 3, v1                  ; rg")
    a("s_lshl_b32 s23, s21, 5")
    a("s_sub_u32 s23, s23, 3")
    a("v_lshlrev_b32 v4, 2, v3")
    a("v_add_u32 v4, s23, v4")
    a("s_lshl_b32 s24, s22, 7")
    a("v_lshlrev_b32 v5, 4, v2")
    a("v_add_u32 v5, s24, v5                    ; colbyte")
    a("v_lshlrev_b32 v6, 10, v4")
    a("v_add_u32 v6, v6, v5")
    for i in range(1, 7):
        a("v_add_u32 v%d, %d, v6" % (6 + i, 1024 * i))
    a("v_add_u32 v13, 3072, v6")
    a("s_lshl_b32 s25, s22, 9")
    a("v_lshlrev_b32 v14, 6, v2")
    a("v_add_u32 v14, s25, v14")
    a("s_waitcnt lgkmcnt(0)")
    make_srd(a, 28, 6, S * D * 2)
    make_srd(a, 32, 8, S * D * 2)
    make_srd(a, 36, 10, D * 4 * 2)
    make_srd(a, 40, 4, WS_BYTES)
    for i in range(7):
        a("buffer_load_dwordx4 v[%d:%d], v%d, s[28:31], 0 offen" % (16 + 4 * i, 19 + 4 * i, 6 + i))
    for i in range(4):
        a("buffer_load_dwordx4 v[%d:%d], v13, s[32:35], 0 offen offset:%d" % (44 + 4 * i, 47 + 4 * i, 1024 * i))
    for i in range(4):
        a("buffer_load_dwordx4 v[%d:%d], v14, s[36:39], 0 offen offset:%d" % (60 + 4 * i, 63 + 4 * i, 16 * i))
    a("v_lshlrev_b32 v126, 3, v2")
    a("s_lshl_b32 s26, s22, 6")
    a("v_add_u32 v126, s26, v126")
    a("v_lshlrev_b32 v126, 12, v126")
    a("s_lshl_b32 s26, s21, 6")
    a("s_add_u32 s26, s26, %d" % (WS_KVT + 56))
    a("v_add_u32 v126, s26, v126")
    a("v_lshlrev_b32 v125, 3, v3")
    a("v_sub_u32 v126, v126, v125")
    a("s_waitcnt vmcnt(0)")
    KF, VF, SKF, P, ACC, T, KV, PK = 80, 94, 102, 110, 112, 114, 116, 124
    for pc in range(4):
        for i in range(7):
            a("v_lshlrev_b32 v%d, 16, v%d" % (KF + 2 * i, 16 + 4 * i + pc))
            a("v_and_b32 v%d, 0xffff0000, v%d" % (KF + 2 * i + 1, 16 + 4 * i + pc))
        for i in range(4):
            a("v_lshlrev_b32 v%d, 16, v%d" % (VF + 2 * i, 44 + 4 * i + pc))
            a("v_and_b32 v%d, 0xffff0000, v%d" % (VF + 2 * i + 1, 44 + 4 * i + pc))
        dw = [60 + 4 * pc + j for j in range(4)]
        a("v_lshlrev_b32 v%d, 16, v%d" % (SKF + 0, dw[0]))
        a("v_lshlrev_b32 v%d, 16, v%d" % (SKF + 1, dw[2]))
        a("v_and_b32 v%d, 0xffff0000, v%d" % (SKF + 2, dw[0]))
        a("v_and_b32 v%d, 0xffff0000, v%d" % (SKF + 3, dw[2]))
        a("v_lshlrev_b32 v%d, 16, v%d" % (SKF + 4, dw[1]))
        a("v_lshlrev_b32 v%d, 16, v%d" % (SKF + 5, dw[3]))
        a("v_and_b32 v%d, 0xffff0000, v%d" % (SKF + 6, dw[1]))
        a("v_and_b32 v%d, 0xffff0000, v%d" % (SKF + 7, dw[3]))
        for i in range(4):
            for t in range(4):
                a("v_pk_mul_f32 v[%d:%d], v[%d:%d], v[%d:%d]" % (P, P + 1, KF + 2 * (i + t), KF + 2 * (i + t) + 1,
                                                               SKF + 2 * (3 - t), SKF + 2 * (3 - t) + 1))
                if t == 0:
                    a("v_cvt_pk_bf16_f32 v%d, v%d, v%d" % (T, P, P + 1))
                    a("v_lshlrev_b32 v%d, 16, v%d" % (ACC, T))
                    a("v_and_b32 v%d, 0xffff0000, v%d" % (ACC + 1, T))
                else:
                    round2(a, P, P + 1, T)
                    a("v_pk_add_f32 v[%d:%d], v[%d:%d], v[%d:%d]" % (ACC, ACC + 1, ACC, ACC + 1, P, P + 1))
                    round2(a, ACC, ACC + 1, T)
            a("v_pk_mul_f32 v[%d:%d], v[%d:%d], v[%d:%d]" % (KV + 2 * i, KV + 2 * i + 1, ACC, ACC + 1, VF + 2 * i, VF + 2 * i + 1))
        for b in range(2):
            c = 2 * pc + b
            a("v_cvt_pk_bf16_f32 v%d, v%d, v%d" % (PK, KV + 6 + b, KV + 4 + b))
            a("v_cvt_pk_bf16_f32 v%d, v%d, v%d" % (PK + 1, KV + 2 + b, KV + 0 + b))
            a("buffer_store_dwordx2 v[%d:%d], v126, s[40:43], 0 offen" % (PK, PK + 1))
            if c != 7:
                a("v_add_u32 v126, 0x1000, v126")
            a("s_nop 0")
    a("s_branch L_k0_done")

    a.lab("L_k0_jobB")
    load_ptr(a, 6, "q"); load_ptr(a, 8, "gate_w")
    a("s_sub_u32 s20, s2, %d" % NA_WG)
    a("s_lshl_b32 s20, s20, 2")
    a("s_add_u32 s20, s20, s3")
    a("s_lshl_b32 s20, s20, 2")
    a("v_lshlrev_b32 v2, 4, v1                  ; lane*16")
    a("s_lshl_b32 s21, s20, 10")
    a("v_add_u32 v3, s21, v2                    ; x offset")
    a("s_waitcnt lgkmcnt(0)")
    make_srd(a, 28, 6, S * D * 2)
    make_srd(a, 32, 8, D * 2)
    make_srd(a, 40, 4, WS_BYTES)
    a("buffer_load_dwordx4 v[8:11], v2, s[32:35], 0 offen")
    for i in range(4):
        a("buffer_load_dwordx4 v[%d:%d], v3, s[28:31], 0 offen offset:%d" % (12 + 4 * i, 15 + 4 * i, 1024 * i))
    a("s_waitcnt vmcnt(0)")
    WF, XF, P, ACC, T = 32, 40, 42, 44, 46
    for j in range(4):
        a("v_lshlrev_b32 v%d, 16, v%d" % (WF + 2 * j, 8 + j))
        a("v_and_b32 v%d, 0xffff0000, v%d" % (WF + 2 * j + 1, 8 + j))
    a("s_mov_b32 s30, 0x3fb8aa3b                ; log2(e)")
    for i in range(4):
        for j in range(4):
            a("v_lshlrev_b32 v%d, 16, v%d" % (XF, 12 + 4 * i + j))
            a("v_and_b32 v%d, 0xffff0000, v%d" % (XF + 1, 12 + 4 * i + j))
            a("v_pk_mul_f32 v[%d:%d], v[%d:%d], v[%d:%d]" % (P, P + 1, XF, XF + 1, WF + 2 * j, WF + 2 * j + 1))
            round2(a, P, P + 1, T)
            if j == 0:
                a("v_mov_b32 v%d, v%d" % (ACC, P)); a("v_mov_b32 v%d, v%d" % (ACC + 1, P + 1))
            else:
                a("v_pk_add_f32 v[%d:%d], v[%d:%d], v[%d:%d]" % (ACC, ACC + 1, ACC, ACC + 1, P, P + 1))
        a("v_add_f32 v%d, v%d, v%d" % (ACC, ACC, ACC + 1))
        for ctl in ["quad_perm:[1,0,3,2]", "quad_perm:[2,3,0,1]", "row_half_mirror", "row_mirror"]:
            a("s_nop 1")
            a("v_add_f32_dpp v%d, v%d, v%d %s row_mask:0xf bank_mask:0xf" % (ACC, ACC, ACC, ctl))
        a("s_nop 1")
        a("v_readlane_b32 s50, v%d, 0" % ACC)
        a("v_readlane_b32 s51, v%d, 16" % ACC)
        a("v_readlane_b32 s52, v%d, 32" % ACC)
        a("v_readlane_b32 s53, v%d, 48" % ACC)
        a("s_nop 1")
        a("v_mov_b32 v%d, s50" % T)
        a("v_add_f32 v%d, s51, v%d" % (T, T))
        a("v_add_f32 v%d, s52, v%d" % (T, T))
        a("v_add_f32 v%d, s53, v%d" % (T, T))
        a("v_cvt_pk_bf16_f32 v%d, v%d, v%d" % (T, T, T))
        a("v_lshlrev_b32 v%d, 16, v%d" % (T, T))
        a("v_mul_f32 v%d, s30, v%d" % (T, T))
        a("v_exp_f32 v%d, -v%d" % (T, T))
        a("s_nop 0")
        a("v_add_f32 v%d, 1.0, v%d" % (T, T))
        a("v_rcp_f32 v%d, v%d" % (T, T))
        a("s_nop 0")
        a("v_cvt_pk_bf16_f32 v%d, v%d, v%d" % (T, T, T))
        a("v_lshlrev_b32 v%d, 16, v%d" % (T, T))
        a("v_mov_b32 v%d, v%d" % (48 + i, T))
    a("s_lshl_b32 s21, s20, 2")
    a("s_add_u32 s21, s21, %d" % WS_G)
    a("v_mov_b32 v2, s21")
    a("v_cmp_eq_u32 vcc, 0, v1")
    a("s_and_saveexec_b64 s[54:55], vcc")
    a("buffer_store_dwordx4 v[48:51], v2, s[40:43], 0 offen")
    a("s_mov_b64 exec, s[54:55]")
    a("s_branch L_k0_done")

    a.lab("L_k0_jobC")
    load_ptr(a, 6, "w1"); load_ptr(a, 8, "w2")
    a("s_sub_u32 s20, s2, %d" % (NA_WG + NB_WG))
    a("s_lshl_b32 s20, s20, 2")
    a("s_add_u32 s20, s20, s3")
    a("v_and_b32 v2, 7, v1")
    a("v_lshrrev_b32 v3, 3, v1")
    a("s_waitcnt lgkmcnt(0)")
    make_srd(a, 40, 4, WS_BYTES)
    a("s_cmp_ge_u32 s20, 176")
    a("s_cbranch_scc1 L_k0_jobC_w2")
    make_srd(a, 28, 6, D * F * 2)
    a("s_mul_hi_u32 s21, s20, %d" % ((1 << 32) // 22 + 1))
    a("s_mul_i32 s22, s21, 22")
    a("s_sub_u32 s22, s20, s22                  ; ft")
    a("s_lshl_b32 s23, s21, 6")
    a("v_lshlrev_b32 v4, 3, v3")
    a("v_add_u32 v4, s23, v4                    ; k0")
    a("s_lshl_b32 s24, s22, 6")
    a("v_lshlrev_b32 v5, 3, v2")
    a("v_add_u32 v5, s24, v5                    ; f0")
    a("s_movk_i32 s25, 2752")
    a("v_mul_lo_u32 v6, v4, s25")
    a("v_lshlrev_b32 v7, 1, v5")
    a("v_add_u32 v6, v6, v7")
    a("v_cmp_gt_u32 vcc, %d, v5" % F)
    a("v_mov_b32 v7, 0x7fffffff")
    a("s_nop 1")
    a("v_cndmask_b32 v6, v7, v6, vcc")
    a("s_mov_b32 s26, 2752")
    for i in range(8):
        if i > 0:
            a("v_add_u32 v6, s26, v6")
        a("buffer_load_dwordx4 v[%d:%d], v6, s[28:31], 0 offen" % (16 + 4 * i, 19 + 4 * i))
    a("v_lshlrev_b32 v8, 10, v5")
    a("v_lshlrev_b32 v9, 1, v4")
    a("v_add_u32 v8, v8, v9")
    a("v_add_u32 v8, 0x%x, v8" % WS_W1T)
    a("s_movk_i32 s27, 1024")
    a("s_branch L_k0_jobC_common")
    a.lab("L_k0_jobC_w2")
    make_srd(a, 28, 8, F * D * 2)
    a("s_sub_u32 s20, s20, 176")
    a("s_lshr_b32 s21, s20, 3                   ; ft")
    a("s_and_b32 s22, s20, 7                    ; dt")
    a("s_lshl_b32 s23, s21, 6")
    a("v_lshlrev_b32 v4, 3, v3")
    a("v_add_u32 v4, s23, v4                    ; f0")
    a("s_lshl_b32 s24, s22, 6")
    a("v_lshlrev_b32 v5, 3, v2")
    a("v_add_u32 v5, s24, v5                    ; d0")
    a("v_lshlrev_b32 v6, 10, v4")
    a("v_lshlrev_b32 v7, 1, v5")
    a("v_add_u32 v6, v6, v7")
    for i in range(8):
        a("buffer_load_dwordx4 v[%d:%d], v6, s[28:31], 0 offen offset:%d" % (16 + 4 * i, 19 + 4 * i, 1024 * i) if i < 4 else
          "buffer_load_dwordx4 v[%d:%d], v7, s[28:31], 0 offen offset:%d" % (16 + 4 * i, 19 + 4 * i, 1024 * (i - 4)))
        if i == 3:
            a("v_add_u32 v7, 0x1000, v6")
    a("s_movk_i32 s25, 2816")
    a("v_mul_lo_u32 v8, v5, s25")
    a("v_lshlrev_b32 v9, 1, v4")
    a("v_add_u32 v8, v8, v9")
    a("v_add_u32 v8, 0x%x, v8" % WS_W2T)
    a("s_movk_i32 s27, 2816")
    a.lab("L_k0_jobC_common")
    a("s_mov_b32 s44, 0x05040100")
    a("s_mov_b32 s45, 0x07060302")
    a("s_waitcnt vmcnt(0)")
    for c in range(8):
        for jj in range(4):
            src_lo = 16 + 4 * (2 * jj) + c // 2
            src_hi = 16 + 4 * (2 * jj + 1) + c // 2
            a("v_perm_b32 v%d, v%d, v%d, s%d" % (60 + jj, src_hi, src_lo, 44 + (c & 1)))
        a("buffer_store_dwordx4 v[60:63], v8, s[40:43], 0 offen")
        if c != 7:
            a("v_add_u32 v8, s27, v8")
        a("s_nop 1")
    a.lab("L_k0_done")
    a("s_endpgm")
    return name, 128
```

```python
from common import *

import os
DEBUG_DUMP = os.environ.get('DBGDUMP')
N_CONV_WG = 128
N_G1_WG = 128
K1_WGS = N_CONV_WG + N_G1_WG
K1_BLOCK = 512

CB = {1: 0, 2: 4416, 3: 8832, 0: 13240}
KVBASE = 17408
CONV_WAVE_LDS = 25088
CONV_LDS = 4 * CONV_WAVE_LDS
G1_ROWB = 144
G1_A_ROWS, G1_B_ROWS = 192, 128
G1_BUF = (G1_A_ROWS + G1_B_ROWS) * G1_ROWB
G1_LDS = 2 * G1_BUF
K1_LDS = max(CONV_LDS, G1_LDS)

def gen_conv(a):
    a.cmt("================= conv workgroups =================")
    a("s_cmp_ge_u32 s3, 4")
    a("s_cbranch_scc1 L_k1_done")
    load_ptr(a, 6, "ssm_k"); load_ptr(a, 8, "ssm_D")
    a("s_lshl_b32 s20, s2, 2")
    a("s_add_u32 s20, s20, s3                   ; channel d")
    a("s_mul_i32 s21, s3, %d                    ; wave LDS base" % CONV_WAVE_LDS)
    a("v_and_b32 v2, 31, v1                     ; r / n")
    a("v_lshrrev_b32 v3, 5, v1                  ; g / h")
    a("s_waitcnt lgkmcnt(0)")
    make_srd(a, 28, 6, D * S * 2)
    make_srd(a, 32, 8, D * 2)
    make_srd(a, 40, 4, WS_BYTES)
    a("v_mov_b32 v24, 0"); a("v_mov_b32 v25, 0"); a("v_mov_b32 v26, 0"); a("v_mov_b32 v27, 0")
    a("v_lshlrev_b32 v4, 4, v1                  ; lane*16")
    a("v_add_u32 v5, s21, v4")
    for rnd in range(3):
        a("ds_write_b128 v5, v[24:27] offset:%d" % (KVBASE + 1024 * rnd))
    a("s_lshl_b32 s22, s20, 12                  ; d*4096")
    a("v_add_u32 v6, s22, v4")
    a("s_add_u32 s23, s22, %d" % WS_KVT)
    a("v_add_u32 v7, s23, v4")
    HW, HV, HU = 64, 68, 72
    KVR = 76
    for rnd in range(4):
        a("buffer_load_dwordx4 v[%d:%d], v7, s[40:43], 0 offen offset:%d" % (KVR + 4 * rnd, KVR + 4 * rnd + 3, 1024 * rnd))
    HR = 96
    for rnd in range(4):
        for j in range(3):
            a("buffer_load_dwordx4 v[%d:%d], v6, s[28:31], 0 offen offset:%d" % (HR + 12 * rnd + 4 * j, HR + 12 * rnd + 4 * j + 3, 1024 * rnd + 4 * j))
    a("s_lshl_b32 s24, s20, 1")
    a("v_mov_b32 v8, s24")
    a("buffer_load_ushort v9, v8, s[32:35], 0 offen")
    a("v_add_u32 v10, 1, v2")
    a("v_and_b32 v11, 3, v10                    ; c")
    a("v_mov_b32 v12, %d" % CB[0])
    for c in (1, 2, 3):
        a("v_cmp_eq_u32 vcc, %d, v11" % c)
        a("v_mov_b32 v13, %d" % CB[c])
        a("s_nop 1")
        a("v_cndmask_b32 v12, v12, v13, vcc")
    a("v_lshlrev_b32 v13, 3, v3")
    a("v_add_u32 v13, v13, v10")
    a("v_sub_u32 v13, v13, v11")
    a("v_lshlrev_b32 v13, 1, v13")
    a("v_add3_u32 v20, v12, v13, s21            ; aL")
    a("v_mul_u32_u24 v13, 80, v2")
    a("v_lshlrev_b32 v14, 4, v3")
    a("v_add3_u32 v21, v13, v14, s21")
    a("v_add_u32 v21, %d, v21                   ; bL'" % KVBASE)
    a("v_lshlrev_b32 v14, 3, v3")
    a("v_sub_u32 v22, v13, v14")
    a("v_add_u32 v22, %d, v22" % (KVBASE + 80 * 31 + 56 - 48))
    a("v_add_u32 v22, s21, v22                  ; kvE'")
    a("s_add_u32 s25, s22, %d" % WS_Y2T)
    a("v_lshlrev_b32 v13, 6, v2")
    a("v_lshlrev_b32 v14, 3, v3")
    a("v_add3_u32 v23, v13, v14, s25")
    MK = 152
    for ks in range(2):
        a("v_lshlrev_b32 v13, 3, v3")
        a("v_add_u32 v13, v13, v2")
        a("v_sub_u32 v13, %d, v13               ; thr" % (16 * ks + 15))
        for dw in range(4):
            a("v_cmp_le_i32 vcc, v13, %d" % (2 * dw))
            a("v_mov_b32 v14, 0xffff")
            a("s_nop 1")
            a("v_cndmask_b32 v%d, 0, v14, vcc" % (MK + 4 * ks + dw))
            a("v_cmp_le_i32 vcc, v13, %d" % (2 * dw + 1))
            a("v_mov_b32 v14, 0xffff0000")
            a("s_nop 1")
            a("v_cndmask_b32 v15, 0, v14, vcc")
            a("v_or_b32 v%d, v%d, v15" % (MK + 4 * ks + dw, MK + 4 * ks + dw))
    a("v_lshrrev_b32 v13, 2, v1")
    a("v_mul_u32_u24 v13, 80, v13")
    a("v_and_b32 v14, 3, v1")
    a("v_lshlrev_b32 v14, 4, v14")
    a("v_add3_u32 v15, v13, v14, s21")
    a("v_add_u32 v15, %d, v15" % (KVBASE + 80 * 31))
    a("s_waitcnt vmcnt(13)")
    for rnd in range(4):
        a("ds_write_b128 v15, v[%d:%d] offset:%d" % (KVR + 4 * rnd, KVR + 4 * rnd + 3, 1280 * rnd))
    for rnd in range(4):
        a("s_waitcnt vmcnt(%d)" % (1 + 3 * (3 - rnd)))
        W = HR + 12 * rnd; V = W + 4; U = W + 8
        a("ds_write_b128 v5, v[%d:%d] offset:%d" % (W, W + 3, CB[0] + 64 + 1024 * rnd))
        a("ds_write_b128 v5, v[%d:%d] offset:%d" % (V, V + 3, CB[2] + 64 + 1024 * rnd))
        T1 = 144; T3 = 148
        a("v_alignbit_b32 v%d, v%d, v%d, 16" % (T1 + 0, W + 1, W + 0))
        a("v_alignbit_b32 v%d, v%d, v%d, 16" % (T1 + 1, W + 2, W + 1))
        a("v_alignbit_b32 v%d, v%d, v%d, 16" % (T1 + 2, W + 3, W + 2))
        a("v_alignbit_b32 v%d, v%d, v%d, 16" % (T1 + 3, V + 3, W + 3))
        a("v_alignbit_b32 v%d, v%d, v%d, 16" % (T3 + 0, V + 1, V + 0))
        a("v_alignbit_b32 v%d, v%d, v%d, 16" % (T3 + 1, V + 2, V + 1))
        a("v_alignbit_b32 v%d, v%d, v%d, 16" % (T3 + 2, V + 3, V + 2))
        a("v_alignbit_b32 v%d, v%d, v%d, 16" % (T3 + 3, U + 3, V + 3))
        a("ds_write_b128 v5, v[%d:%d] offset:%d" % (T1, T1 + 3, CB[1] + 64 + 1024 * rnd))
        a("ds_write_b128 v5, v[%d:%d] offset:%d" % (T3, T3 + 3, CB[3] + 64 + 1024 * rnd))
        a("s_nop 1")
    a("v_cmp_le_u32 vcc, 1, v1")
    a("v_cndmask_b32 v13, 1, 2, vcc")
    a("v_cmp_le_u32 vcc, 3, v1")
    a("s_nop 1")
    a("v_cndmask_b32 v13, v13, 3, vcc           ; c")
    a("v_cmp_eq_u32 vcc, 2, v13")
    a("v_cndmask_b32 v14, 0, 1, vcc")
    a("v_cmp_eq_u32 vcc, 3, v13")
    a("s_nop 1")
    a("v_cndmask_b32 v14, v14, 3, vcc           ; tri")
    a("v_sub_u32 v14, v1, v14                   ; i")
    a("v_lshlrev_b32 v15, 1, v14")
    a("v_add_u32 v16, s22, v15")
    a("v_mov_b32 v17, %d" % CB[1])
    a("v_cmp_eq_u32 vcc, 2, v13")
    a("v_mov_b32 v18, %d" % CB[2])
    a("s_nop 1")
    a("v_cndmask_b32 v17, v17, v18, vcc")
    a("v_cmp_eq_u32 vcc, 3, v13")
    a("v_mov_b32 v18, %d" % CB[3])
    a("s_nop 1")
    a("v_cndmask_b32 v17, v17, v18, vcc")
    a("v_sub_u32 v18, 32, v13")
    a("v_add_u32 v18, v18, v14")
    a("v_lshlrev_b32 v18, 1, v18")
    a("v_add3_u32 v17, v17, v18, s21")
    a("v_cmp_gt_u32 vcc, 6, v1")
    a("s_and_saveexec_b64 s[54:55], vcc")
    a("buffer_load_ushort v19, v16, s[28:31], 0 offen")
    a("s_waitcnt vmcnt(0)")
    a("ds_write_b16 v17, v19")
    a("s_mov_b64 exec, s[54:55]")
    a("s_waitcnt vmcnt(0) lgkmcnt(0)")
    a("v_lshlrev_b32 v9, 16, v9                 ; D as f32")
    if DEBUG_DUMP:
        a("s_cmp_lg_u32 s20, 0")
        a("s_cbranch_scc1 L_dbg_skip")
        a("v_add_u32 v16, 0x1000000, v4")
        for rnd in range(25):
            a("ds_read_b128 v[24:27], v5 offset:%d" % (1024 * rnd))
            a("s_waitcnt lgkmcnt(0)")
            a("buffer_store_dwordx4 v[24:27], v16, s[40:43], 0 offen offset:0")
            a("v_add_u32 v16, 0x400, v16")
            a("s_waitcnt vmcnt(0)")
        a.lab("L_dbg_skip")
    ACC0, ACC1 = 32, 48
    for i in range(32):
        a("v_mov_b32 v%d, 0" % (ACC0 + i))
    steps = [(d2, ks) for d2 in range(32) for ks in range(2)]
    SETS = [64, 80]
    def issue(idx):
        d2, ks = steps[idx]
        base = SETS[idx % 2]
        A1, A2, B1, B2 = base, base + 4, base + 8, base + 12
        m1 = 2 * d2 + 1 - ks
        a("ds_read_b64 v[%d:%d], v20 offset:%d" % (A1, A1 + 1, 32 * m1))
        a("ds_read_b64 v[%d:%d], v20 offset:%d" % (A1 + 2, A1 + 3, 32 * m1 + 8))
        a("ds_read_b64 v[%d:%d], v20 offset:%d" % (A2, A2 + 1, 32 * m1 + 2048))
        a("ds_read_b64 v[%d:%d], v20 offset:%d" % (A2 + 2, A2 + 3, 32 * m1 + 2048 + 8))
        boff = 80 * (31 - d2) + 32 * (1 - ks)
        a("ds_read_b128 v[%d:%d], v21 offset:%d" % (B2, B2 + 3, boff))
        a("ds_read_b128 v[%d:%d], v21 offset:%d" % (B1, B1 + 3, boff + 2560))
    issue(0)
    for idx in range(len(steps)):
        if idx + 1 < len(steps):
            issue(idx + 1)
            a("s_waitcnt lgkmcnt(6)")
        else:
            a("s_waitcnt lgkmcnt(0)")
        d2, ks = steps[idx]
        base = SETS[idx % 2]
        A1, A2, B1, B2 = base, base + 4, base + 8, base + 12
        if d2 == 0:
            for dw in range(4):
                a("v_and_b32 v%d, v%d, v%d" % (A1 + dw, A1 + dw, MK + 4 * ks + dw))
            a("s_nop 1")
        a("v_mfma_f32_32x32x16_bf16 v[%d:%d], v[%d:%d], v[%d:%d], v[%d:%d]" % (ACC1, ACC1 + 15, A1, A1 + 3, B1, B1 + 3, ACC1, ACC1 + 15))
        a("v_mfma_f32_32x32x16_bf16 v[%d:%d], v[%d:%d], v[%d:%d], v[%d:%d]" % (ACC0, ACC0 + 15, A1, A1 + 3, B2, B2 + 3, ACC0, ACC0 + 15))
        a("v_mfma_f32_32x32x16_bf16 v[%d:%d], v[%d:%d], v[%d:%d], v[%d:%d]" % (ACC1, ACC1 + 15, A2, A2 + 3, B2, B2 + 3, ACC1, ACC1 + 15))
    for Nt in range(2):
        for j in range(4):
            a("ds_read_b64 v[%d:%d], v22 offset:%d" % (96 + 2 * (4 * Nt + j), 97 + 2 * (4 * Nt + j), 2560 * Nt + 16 * (3 - j)))
    a("s_nop 7"); a("s_nop 7")
    a("s_waitcnt lgkmcnt(0)")
    a("v_mov_b32 v10, v9")
    a("v_mov_b32 v11, v9")
    P0, P1, T = 120, 122, 124
    for Nt in range(2):
        ACC = ACC0 if Nt == 0 else ACC1
        for j in range(4):
            dw0 = 96 + 2 * (4 * Nt + j); dw1 = dw0 + 1
            for pr, dw in ((0, dw1), (1, dw0)):
                a("v_and_b32 v%d, 0xffff0000, v%d" % (P0, dw))
                a("v_lshlrev_b32 v%d, 16, v%d" % (P0 + 1, dw))
                a("v_pk_mul_f32 v[%d:%d], v[%d:%d], v[10:11]" % (P0, P0 + 1, P0, P0 + 1))
                round2(a, P0, P0 + 1, T)
                y0 = ACC + 4 * j + 2 * pr
                a("v_cvt_pk_bf16_f32 v%d, v%d, v%d" % (T, y0, y0 + 1))
                a("v_lshlrev_b32 v%d, 16, v%d" % (P1, T))
                a("v_and_b32 v%d, 0xffff0000, v%d" % (P1 + 1, T))
                a("v_pk_add_f32 v[%d:%d], v[%d:%d], v[%d:%d]" % (P1, P1 + 1, P1, P1 + 1, P0, P0 + 1))
                a("v_cvt_pk_bf16_f32 v%d, v%d, v%d" % (126 + pr, P1, P1 + 1))
            a("buffer_store_dwordx2 v[126:127], v23, s[40:43], 0 offen offset:%d" % (2048 * Nt + 16 * j))
            a("s_nop 0")
    a("s_branch L_k1_done")

def gen_k1(a, with_gemm=True):
    name = "conv_gemm1_kernel"
    kernel_header(a, name)
    a("v_readfirstlane_b32 s3, v0")
    a("s_lshr_b32 s3, s3, 6")
    a("v_and_b32 v1, 63, v0                     ; lane")
    load_ptr(a, 4, "ws")
    a("s_cmp_ge_u32 s2, %d" % K1_WGS)
    a("s_cbranch_scc1 L_k1_done")
    a("s_cmp_ge_u32 s2, %d" % N_CONV_WG)
    a("s_cbranch_scc1 L_k1_gemm1")
    gen_conv(a)
    a.lab("L_k1_gemm1")
    if with_gemm:
        import k1g
        k1g.gen_gemm1(a)
    a.lab("L_k1_done")
    a("s_endpgm")
    return name, 168, 96
```

```python
from common import *
import k1

ROWB = k1.G1_ROWB
BOFF = k1.G1_A_ROWS * ROWB
BUF = k1.G1_BUF
NCH = 8

def mish_pair(a, X, BP, T, W0, W1, consts):
    sNL2E, s2L2E, sLN2 = consts
    round2(a, X, X + 1, T)
    a("v_pk_add_f32 v[%d:%d], v[%d:%d], v[%d:%d]" % (X, X + 1, X, X + 1, BP, BP + 1))
    round2(a, X, X + 1, T)
    a("v_mul_f32_e64 v%d, s%d, |v%d|" % (W0, sNL2E, X))
    a("v_mul_f32_e64 v%d, s%d, |v%d|" % (W0 + 1, sNL2E, X + 1))
    a("v_exp_f32 v%d, v%d" % (W0, W0))
    a("v_exp_f32 v%d, v%d" % (W0 + 1, W0 + 1))
    a("s_nop 0")
    round2(a, W0, W0 + 1, T)
    a("v_pk_add_f32 v[%d:%d], v[%d:%d], 1.0" % (W1, W1 + 1, W0, W0 + 1))
    a("v_pk_add_f32 v[%d:%d], v[%d:%d], -1.0" % (T + 1, T + 2, W1, W1 + 1))
    a("v_pk_add_f32 v[%d:%d], v[%d:%d], v[%d:%d] neg_lo:[0,1] neg_hi:[0,1]" % (W0, W0 + 1, W0, W0 + 1, T + 1, T + 2))
    a("v_log_f32 v%d, v%d" % (W1, W1))
    a("v_log_f32 v%d, v%d" % (W1 + 1, W1 + 1))
    a("s_nop 0")
    a("v_pk_fma_f32 v[%d:%d], v[%d:%d], s[%d:%d], v[%d:%d] op_sel_hi:[1,0,1]" % (W0, W0 + 1, W1, W1 + 1, sLN2, sLN2 + 1, W0, W0 + 1))
    round2(a, W0, W0 + 1, T)
    a("v_max_f32 v%d, 0, v%d" % (W1, X))
    a("v_max_f32 v%d, 0, v%d" % (W1 + 1, X + 1))
    a("v_pk_add_f32 v[%d:%d], v[%d:%d], v[%d:%d]" % (W0, W0 + 1, W0, W0 + 1, W1, W1 + 1))
    round2(a, W0, W0 + 1, T)
    a("v_pk_mul_f32 v[%d:%d], v[%d:%d], s[%d:%d] op_sel_hi:[1,0]" % (W0, W0 + 1, W0, W0 + 1, s2L2E, s2L2E + 1))
    a("v_exp_f32 v%d, v%d" % (W0, W0))
    a("v_exp_f32 v%d, v%d" % (W0 + 1, W0 + 1))
    a("s_nop 0")
    a("v_pk_add_f32 v[%d:%d], v[%d:%d], 1.0" % (W0, W0 + 1, W0, W0 + 1))
    a("v_rcp_f32 v%d, v%d" % (W0, W0))
    a("v_rcp_f32 v%d, v%d" % (W0 + 1, W0 + 1))
    a("s_nop 0")
    a("v_pk_fma_f32 v[%d:%d], v[%d:%d], -2.0, 1.0" % (W0, W0 + 1, W0, W0 + 1))
    round2(a, W0, W0 + 1, T)
    a("v_pk_mul_f32 v[%d:%d], v[%d:%d], v[%d:%d]" % (X, X + 1, X, X + 1, W0, W0 + 1))

def gen_gemm1(a):
    a.cmt("================= gemm1 workgroups =================")
    load_ptr(a, 6, "q"); load_ptr(a, 8, "b1")
    a("s_sub_u32 s20, s2, %d" % k1.N_CONV_WG)
    a("s_lshr_b32 s21, s20, 3                   ; s tile")
    a("s_and_b32 s22, s20, 7                    ; f tile")
    a("s_mul_i32 s23, s22, 192                  ; f0")
    a("s_lshl_b32 s24, s21, 7                   ; s0")
    a("s_lshr_b32 s25, s3, 2                    ; fh")
    a("s_and_b32 s26, s3, 3                     ; sb")
    a("v_and_b32 v2, 31, v1")
    a("v_lshrrev_b32 v3, 5, v1")
    a("v_lshrrev_b32 v4, 3, v0")
    a("v_and_b32 v5, 7, v0                      ; j")
    a("v_lshlrev_b32 v6, 4, v5                  ; j*16")
    a("s_waitcnt lgkmcnt(0)")
    make_srd(a, 28, 6, S * D * 2)
    make_srd(a, 32, 8, F * 2)
    make_srd(a, 40, 4, WS_BYTES)
    a("v_add_u32 v7, s23, v4")
    a("v_lshlrev_b32 v7, 10, v7")
    a("v_add_u32 v7, v7, v6")
    a("v_add_u32 v8, 0x%x, v7" % WS_W1T)
    a("v_add_u32 v9, 0x10000, v8")
    a("v_add_u32 v10, 0x20000, v8")
    a("v_add_u32 v7, s24, v4")
    a("v_lshlrev_b32 v7, 10, v7")
    a("v_add_u32 v11, v7, v6")
    a("v_add_u32 v12, 0x10000, v11")
    a("v_mul_u32_u24 v13, %d, v4" % ROWB)
    a("v_add_u32 v13, v13, v6")
    a("v_add_u32 v18, %d, v13" % BUF)
    a("s_mul_i32 s27, s25, 96")
    a("v_add_u32 v14, s27, v2")
    a("v_mul_u32_u24 v14, %d, v14" % ROWB)
    a("v_lshlrev_b32 v7, 4, v3")
    a("v_add_u32 v14, v14, v7")
    a("s_lshl_b32 s27, s26, 5")
    a("v_add_u32 v15, s27, v2")
    a("v_mul_u32_u24 v15, %d, v15" % ROWB)
    a("v_add_u32 v15, v15, v7")
    a("v_add_u32 v15, %d, v15                   ; B frag base" % BOFF)
    a("s_add_u32 s27, s24, s27")
    a("v_add_u32 v16, s27, v2")
    a("s_movk_i32 s44, 2816")
    a("v_mul_lo_u32 v16, v16, s44")
    a("s_mul_i32 s45, s25, 96")
    a("s_add_u32 s45, s45, s23")
    a("v_lshlrev_b32 v7, 2, v3")
    a("v_add_u32 v7, s45, v7")
    a("v_lshlrev_b32 v17, 1, v7")
    a("v_add_u32 v16, v16, v17")
    a("v_add_u32 v16, 0x%x, v16" % WS_ACT)
    for fb in range(3):
        for j in range(4):
            a("buffer_load_dwordx2 v[%d:%d], v17, s[32:35], 0 offen offset:%d" % (20 + 2 * (4 * fb + j), 21 + 2 * (4 * fb + j), 64 * fb + 16 * j))
    ST = [44, 64]
    def issue_loads(c):
        st = ST[c % 2]
        for i, va in enumerate((8, 9, 10)):
            a("buffer_load_dwordx4 v[%d:%d], v%d, s[40:43], 0 offen offset:%d" % (st + 4 * i, st + 4 * i + 3, va, 128 * c))
        for i, va in enumerate((11, 12)):
            a("buffer_load_dwordx4 v[%d:%d], v%d, s[28:31], 0 offen offset:%d" % (st + 12 + 4 * i, st + 12 + 4 * i + 3, va, 128 * c))
    def write_lds(c):
        st = ST[c % 2]; vb = 13 if c % 2 == 0 else 18
        for i in range(3):
            a("ds_write_b128 v%d, v[%d:%d] offset:%d" % (vb, st + 4 * i, st + 4 * i + 3, 64 * i * ROWB))
        for i in range(2):
            a("ds_write_b128 v%d, v[%d:%d] offset:%d" % (vb, st + 12 + 4 * i, st + 12 + 4 * i + 3, BOFF + 64 * i * ROWB))
    FR = [84, 100]
    ACC = 116
    for i in range(48):
        a("v_mov_b32 v%d, 0" % (ACC + i))
    def frag_reads(c, ks):
        fr = FR[ks % 2]; b = (c % 2) * BUF
        for fb in range(3):
            a("ds_read_b128 v[%d:%d], v14 offset:%d" % (fr + 4 * fb, fr + 4 * fb + 3, b + fb * 32 * ROWB + 32 * ks))
        a("ds_read_b128 v[%d:%d], v15 offset:%d" % (fr + 12, fr + 15, b + 32 * ks))
    issue_loads(0); issue_loads(1)
    a("s_waitcnt vmcnt(5)")
    write_lds(0)
    a("s_waitcnt lgkmcnt(0)")
    a("s_barrier")
    for c in range(NCH):
        if c + 2 < NCH:
            issue_loads(c + 2)
        frag_reads(c, 0)
        for ks in range(4):
            if ks < 3:
                frag_reads(c, ks + 1)
                a("s_waitcnt lgkmcnt(4)")
            else:
                a("s_waitcnt lgkmcnt(0)")
            fr = FR[ks % 2]
            for fb in range(3):
                a("v_mfma_f32_32x32x16_bf16 v[%d:%d], v[%d:%d], v[%d:%d], v[%d:%d]" % (
                    ACC + 16 * fb, ACC + 16 * fb + 15, fr + 4 * fb, fr + 4 * fb + 3, fr + 12, fr + 15, ACC + 16 * fb, ACC + 16 * fb + 15))
        if c + 1 < NCH:
            a("s_waitcnt vmcnt(%d)" % (5 if c + 2 < NCH else 0))
            write_lds(c + 1)
            a("s_waitcnt lgkmcnt(0)")
            a("s_barrier")
    a("s_nop 7"); a("s_nop 7")
    a("s_mov_b32 s46, 0xbfb8aa3b                ; -log2(e)")
    a("s_mov_b32 s48, 0x4038aa3b                ; 2*log2(e)")
    a("s_mov_b32 s49, 0x4038aa3b")
    a("s_mov_b32 s50, 0x3f317218                ; ln2")
    a("s_mov_b32 s51, 0x3f317218")
    BP, W0, W1, T = 44, 46, 48, 51
    for fb in range(3):
        a("s_mul_i32 s52, s25, 96")
        a("s_add_u32 s52, s52, s23")
        a("s_add_u32 s52, s52, %d" % (32 * fb))
        a("s_cmp_ge_u32 s52, %d" % FP)
        a("s_cbranch_scc1 L_g1_skip%d" % fb)
        for j in range(4):
            bdw = 20 + 2 * (4 * fb + j)
            for pr in range(2):
                X = ACC + 16 * fb + 4 * j + 2 * pr
                a("v_lshlrev_b32 v%d, 16, v%d" % (BP, bdw + pr))
                a("v_and_b32 v%d, 0xffff0000, v%d" % (BP + 1, bdw + pr))
                mish_pair(a, X, BP, T, W0, W1, (46, 48, 50))
                a("v_cvt_pk_bf16_f32 v%d, v%d, v%d" % (54 + pr, X, X + 1))
            a("buffer_store_dwordx2 v[54:55], v16, s[40:43], 0 offen offset:%d" % (64 * fb + 16 * j))
            a("s_nop 0")
        a.lab("L_g1_skip%d" % fb)
```

```python
from common import *

K2_WGS = 256
K2_BLOCK = 256
ROWB = 144
BOFF = 64 * ROWB
BUF = 128 * ROWB
K2_LDS = 2 * BUF
NCH = FP // 64

def gen_k2(a):
    name = "gemm2_kernel"
    kernel_header(a, name)
    a("v_readfirstlane_b32 s3, v0")
    a("s_lshr_b32 s3, s3, 6")
    a("v_and_b32 v1, 63, v0")
    load_ptr(a, 4, "ws"); load_ptr(a, 6, "q"); load_ptr(a, 8, "out")
    a("s_cmp_ge_u32 s2, %d" % K2_WGS)
    a("s_cbranch_scc1 L_k2_done")
    a("s_and_b32 s20, s2, 7                     ; d tile")
    a("s_lshr_b32 s21, s2, 3                    ; s tile")
    a("s_lshl_b32 s22, s20, 6                   ; d0")
    a("s_lshl_b32 s23, s21, 6                   ; s0")
    a("s_lshr_b32 s24, s3, 1                    ; wd")
    a("s_and_b32 s25, s3, 1                     ; wsb")
    a("v_and_b32 v2, 31, v1")
    a("v_lshrrev_b32 v3, 5, v1")
    a("v_lshrrev_b32 v4, 3, v0                  ; rowt")
    a("v_and_b32 v5, 7, v0")
    a("v_lshlrev_b32 v6, 4, v5")
    a("s_waitcnt lgkmcnt(0)")
    make_srd(a, 28, 6, S * D * 2)
    make_srd(a, 32, 8, S * D * 2)
    make_srd(a, 40, 4, WS_BYTES)
    a("s_movk_i32 s44, 2816")
    a("v_add_u32 v7, s22, v4")
    a("v_mul_lo_u32 v7, v7, s44")
    a("v_add_u32 v7, v7, v6")
    a("v_add_u32 v8, 0x%x, v7" % WS_W2T)
    a("v_add_u32 v9, %d, v8" % (32 * 2816))
    a("v_add_u32 v7, s23, v4")
    a("v_mul_lo_u32 v7, v7, s44")
    a("v_add_u32 v7, v7, v6")
    a("v_add_u32 v10, 0x%x, v7" % WS_ACT)
    a("v_add_u32 v11, %d, v10" % (32 * 2816))
    a("v_mul_u32_u24 v12, %d, v4" % ROWB)
    a("v_add_u32 v12, v12, v6")
    a("s_lshl_b32 s26, s24, 5")
    a("v_add_u32 v13, s26, v2")
    a("v_mul_u32_u24 v13, %d, v13" % ROWB)
    a("v_lshlrev_b32 v7, 4, v3")
    a("v_add_u32 v13, v13, v7")
    a("s_lshl_b32 s27, s25, 5")
    a("v_add_u32 v14, s27, v2")
    a("v_mul_u32_u24 v14, %d, v14" % ROWB)
    a("v_add_u32 v14, v14, v7")
    a("v_add_u32 v14, %d, v14                   ; B frag base" % BOFF)
    a("s_add_u32 s27, s23, s27")
    a("v_add_u32 v17, s27, v2                   ; srow")
    a("s_add_u32 s26, s22, s26")
    a("v_lshlrev_b32 v7, 2, v3")
    a("v_add_u32 v7, s26, v7                    ; dcol")
    a("v_lshlrev_b32 v15, 10, v17")
    a("v_lshl_add_u32 v15, v7, 1, v15")
    a("v_lshlrev_b32 v16, 12, v7")
    a("v_lshl_add_u32 v16, v17, 1, v16")
    a("v_add_u32 v16, 0x%x, v16                 ; y2T base" % WS_Y2T)
    a("v_lshlrev_b32 v18, 2, v17")
    a("v_add_u32 v18, 0x%x, v18                 ; g offset" % WS_G)
    for j in range(4):
        for i in range(4):
            a("s_mov_b32 s45, %d" % ((8 * j + i) * 4096))
            a("buffer_load_ushort v%d, v16, s[40:43], s45 offen" % (20 + 4 * j + i))
    for j in range(4):
        a("buffer_load_dwordx2 v[%d:%d], v15, s[28:31], 0 offen offset:%d" % (36 + 2 * j, 37 + 2 * j, 16 * j))
    a("buffer_load_dword v44, v18, s[40:43], 0 offen")
    NPRE = 21
    ST = [48, 64, 80]
    def issue_loads(c):
        st = ST[c % 3]
        a("buffer_load_dwordx4 v[%d:%d], v8, s[40:43], 0 offen offset:%d" % (st, st + 3, 128 * c))
        a("buffer_load_dwordx4 v[%d:%d], v9, s[40:43], 0 offen offset:%d" % (st + 4, st + 7, 128 * c))
        a("buffer_load_dwordx4 v[%d:%d], v10, s[40:43], 0 offen offset:%d" % (st + 8, st + 11, 128 * c))
        a("buffer_load_dwordx4 v[%d:%d], v11, s[40:43], 0 offen offset:%d" % (st + 12, st + 15, 128 * c))
    def write_lds(c):
        st = ST[c % 3]; b = (c % 2) * BUF
        a("ds_write_b128 v12, v[%d:%d] offset:%d" % (st, st + 3, b))
        a("ds_write_b128 v12, v[%d:%d] offset:%d" % (st + 4, st + 7, b + 32 * ROWB))
        a("ds_write_b128 v12, v[%d:%d] offset:%d" % (st + 8, st + 11, b + BOFF))
        a("ds_write_b128 v12, v[%d:%d] offset:%d" % (st + 12, st + 15, b + BOFF + 32 * ROWB))
    FR = [96, 104]
    ACC = 112
    for i in range(16):
        a("v_mov_b32 v%d, 0" % (ACC + i))
    def frag_reads(c, ks):
        fr = FR[ks % 2]; b = (c % 2) * BUF
        a("ds_read_b128 v[%d:%d], v13 offset:%d" % (fr, fr + 3, b + 32 * ks))
        a("ds_read_b128 v[%d:%d], v14 offset:%d" % (fr + 4, fr + 7, b + 32 * ks))
    for c in range(3):
        issue_loads(c)
    a("s_waitcnt vmcnt(8)")
    write_lds(0)
    a("s_waitcnt lgkmcnt(0)")
    a("s_barrier")
    for c in range(NCH):
        if c + 3 < NCH:
            issue_loads(c + 3)
        frag_reads(c, 0)
        for ks in range(4):
            if ks < 3:
                frag_reads(c, ks + 1)
                a("s_waitcnt lgkmcnt(2)")
            else:
                a("s_waitcnt lgkmcnt(0)")
            fr = FR[ks % 2]
            a("v_mfma_f32_32x32x16_bf16 v[%d:%d], v[%d:%d], v[%d:%d], v[%d:%d]" % (ACC, ACC + 15, fr, fr + 3, fr + 4, fr + 7, ACC, ACC + 15))
        if c + 1 < NCH:
            later = min(c + 3, NCH - 1) - (c + 1)
            a("s_waitcnt vmcnt(%d)" % (4 * later))
            write_lds(c + 1)
            a("s_waitcnt lgkmcnt(0)")
            a("s_barrier")
    a("s_nop 7"); a("s_nop 7")
    G, OMG = 46, 48
    a("v_mov_b32 v%d, v44" % G); a("v_mov_b32 v%d, v44" % (G + 1))
    a("v_sub_f32 v%d, 1.0, v44" % OMG)
    a("v_cvt_pk_bf16_f32 v50, v%d, v%d" % (OMG, OMG))
    a("v_lshlrev_b32 v%d, 16, v50" % OMG)
    a("v_mov_b32 v%d, v%d" % (OMG + 1, OMG))
    Y, Q, T = 52, 54, 56
    for j in range(4):
        for pr in range(2):
            a("v_lshlrev_b32 v%d, 16, v%d" % (Y, 20 + 4 * j + 2 * pr))
            a("v_lshlrev_b32 v%d, 16, v%d" % (Y + 1, 20 + 4 * j + 2 * pr + 1))
            a("v_lshlrev_b32 v%d, 16, v%d" % (Q, 36 + 2 * j + pr))
            a("v_and_b32 v%d, 0xffff0000, v%d" % (Q + 1, 36 + 2 * j + pr))
            a("v_pk_mul_f32 v[%d:%d], v[%d:%d], v[%d:%d]" % (Y, Y + 1, Q, Q + 1, Y, Y + 1))
            round2(a, Y, Y + 1, T)
            a("v_pk_mul_f32 v[%d:%d], v[%d:%d], v[%d:%d]" % (Y, Y + 1, G, G + 1, Y, Y + 1))
            round2(a, Y, Y + 1, T)
            X = ACC + 4 * j + 2 * pr
            round2(a, X, X + 1, T)
            a("v_pk_mul_f32 v[%d:%d], v[%d:%d], v[%d:%d]" % (X, X + 1, OMG, OMG + 1, X, X + 1))
            round2(a, X, X + 1, T)
            a("v_pk_add_f32 v[%d:%d], v[%d:%d], v[%d:%d]" % (X, X + 1, X, X + 1, Y, Y + 1))
            a("v_cvt_pk_bf16_f32 v%d, v%d, v%d" % (58 + pr, X, X + 1))
        a("buffer_store_dwordx2 v[58:59], v15, s[32:35], 0 offen offset:%d" % (16 * j))
        a("s_nop 0")
    a.lab("L_k2_done")
    a("s_endpgm")
    return name, 128, 96
```

```python
import sys, importlib
from common import *
import k0

HEADER = open("gated_mix__ssm_conv_h3__dense_activation_mish__prompt.s.ref").read().split("; Override launch geometry")[0]

def main(out, which):
    a = Asm()
    launches = []
    kernels = []
    body = Asm()
    if "0" in which:
        n, v = k0.gen_k0(body); kernels.append((n, v, 96))
        launches.append("; @launch kernel=prep_kernel grid=(%d,1,1) block=(256,1,1) lds=0" % k0.K0_WGS)
    if "1" in which:
        import k1
        n, v, sg = k1.gen_k1(body); kernels.append((n, v, sg))
        launches.append("; @launch kernel=%s grid=(%d,1,1) block=(%d,1,1) lds=%d" % (n, k1.K1_WGS, k1.K1_BLOCK, k1.K1_LDS))
    if "2" in which:
        import k2
        n, v, sg = k2.gen_k2(body); kernels.append((n, v, sg))
        launches.append("; @launch kernel=%s grid=(%d,1,1) block=(%d,1,1) lds=%d" % (n, k2.K2_WGS, k2.K2_BLOCK, k2.K2_LDS))
    txt = HEADER
    txt += "\n".join(launches) + "\n"
    txt += '.amdgcn_target "amdgcn-amd-amdhsa--gfx950"\n.text\n'
    txt += body.text()
    txt += '.section .rodata,"a"\n'
    for (n, v, sg) in kernels:
        txt += ".p2align 6\n" + kernel_desc(n, v, sg)
    open(out, "w").write(txt)

if __name__ == "__main__":
    main(sys.argv[1], sys.argv[2] if len(sys.argv) > 2 else "012")
```

```python
class Asm:
    def __init__(self):
        self.L = []
    def __call__(self, s):
        self.L.append("    " + s)
    def lab(self, s):
        self.L.append(s + ":")
    def cmt(self, s):
        self.L.append("    ; " + s)
    def raw(self, s):
        self.L.append(s)
    def text(self):
        return "\n".join(self.L) + "\n"

KA = dict(q=0, k=8, v=16, shift_k=24, ssm_k=32, ssm_D=40, B_x=48, w1=56, b1=64, w2=72, gate_w=80, out=88, dbg=96, ws=104)

S, D, F, FP = 2048, 512, 1376, 1408
WS_KVT = 0
WS_Y2T = 2 << 20
WS_G   = 4 << 20
WS_W1T = 5 << 20
WS_W2T = 7 << 20
WS_ACT = 9 << 20
WS_BYTES = 268435456

def vr(a, n=1):
    return "v%d" % a if n == 1 else "v[%d:%d]" % (a, a + n - 1)
def sr(a, n=1):
    return "s%d" % a if n == 1 else "s[%d:%d]" % (a, a + n - 1)

def load_ptr(a, sreg, name):
    a("s_load_dwordx2 %s, s[0:1], %d" % (sr(sreg, 2), KA[name]))

def make_srd(a, sdst, sptr, nbytes):
    a("s_mov_b32 s%d, s%d" % (sdst, sptr))
    a("s_mov_b32 s%d, s%d" % (sdst + 1, sptr + 1))
    a("s_mov_b32 s%d, 0x%x" % (sdst + 2, nbytes))
    a("s_mov_b32 s%d, 0x00020000" % (sdst + 3))

def kernel_header(a, name):
    a.raw(".globl %s" % name)
    a.raw(".p2align 8")
    a.raw(".type %s,@function" % name)
    a.lab(name)

def kernel_desc(name, vgpr, sgpr=96):
    acc = (vgpr + 3) // 4 * 4
    return """.amdhsa_kernel %s
  .amdhsa_next_free_vgpr %d
  .amdhsa_next_free_sgpr %d
  .amdhsa_accum_offset %d
  .amdhsa_group_segment_fixed_size 0
  .amdhsa_kernarg_size 112
  .amdhsa_user_sgpr_count 2
  .amdhsa_user_sgpr_kernarg_segment_ptr 1
  .amdhsa_system_sgpr_workgroup_id_x 1
  .amdhsa_float_denorm_mode_32 3
  .amdhsa_float_denorm_mode_16_64 3
.end_amdhsa_kernel
""" % (name, vgpr, sgpr, acc)

def round2(a, x0, x1, tmp):
    a("v_cvt_pk_bf16_f32 v%d, v%d, v%d" % (tmp, x0, x1))
    a("v_lshlrev_b32 v%d, 16, v%d" % (x0, tmp))
    a("v_and_b32 v%d, 0xffff0000, v%d" % (x1, tmp))

import os
STAMP = os.environ.get("STAMP") is not None
STAMP_BASE = 24 << 20
def stamp(a, i):
    if STAMP:
        a("s_memtime s[%d:%d]" % (64 + 2 * i, 65 + 2 * i))
def stamp_flush(a, n, srd=40, wgreg="s2", wavereg="s3", kern=0):
    if not STAMP: return
    a("s_waitcnt lgkmcnt(0)")
    a("s_lshl_b32 s62, %s, 3" % wgreg)
    a("s_add_u32 s62, s62, %s" % wavereg)
    a("s_lshl_b32 s62, s62, 6")
    a("s_add_u32 s62, s62, 0x%x" % (STAMP_BASE + kern * 0x40000))
    a("v_mov_b32 v200, s62")
    for i in range(n):
        a("v_mov_b32 v201, s%d" % (64 + 2 * i))
        a("buffer_store_dword v201, v200, s[%d:%d], 0 offen offset:%d" % (srd, srd + 3, 4 * i))
```

```python
from common import *

N_CONV_WG = 128
N_G1_WG = 128
K1_WGS = N_CONV_WG + N_G1_WG
K1_BLOCK = 512

CB = {1: 0, 2: 4416, 3: 8832, 0: 13240}
KVBASE = 17408
CONV_WAVE_LDS = 25088
CONV_LDS = 4 * CONV_WAVE_LDS
import k1g
K1_LDS = max(CONV_LDS, k1g.G1_LDS)

def gen_conv(a):
    a.cmt("================= conv workgroups =================")
    stamp(a, 0)
    load_ptr(a, 6, "ssm_k"); load_ptr(a, 8, "ssm_D"); load_ptr(a, 10, "k"); load_ptr(a, 12, "v"); load_ptr(a, 14, "shift_k")
    a("s_and_b32 s16, s2, 7")
    a("s_lshl_b32 s16, s16, 4")
    a("s_lshr_b32 s17, s2, 3")
    a("s_add_u32 s16, s16, s17                  ; cg")
    a("s_lshl_b32 s17, s16, 2                   ; d0 = 4*cg")
    a("s_and_b32 s18, s3, 3")
    a("s_add_u32 s20, s17, s18")
    a("s_mul_i32 s21, s18, %d                   ; wave LDS base (own channel)" % CONV_WAVE_LDS)
    a("v_and_b32 v2, 31, v1                     ; r / n")
    a("v_lshrrev_b32 v3, 5, v1                  ; g / h")
    a("v_lshlrev_b32 v4, 4, v1                  ; lane*16")
    a("s_waitcnt lgkmcnt(0)")
    make_srd(a, 28, 6, D * S * 2)
    make_srd(a, 32, 8, D * 2)
    make_srd(a, 36, 10, S * D * 2)
    make_srd(a, 44, 12, S * D * 2)
    make_srd(a, 48, 14, D * 4 * 2)
    make_srd(a, 40, 4, WS_BYTES)
    a("s_lshl_b32 s22, s20, 12                  ; d*4096")
    HR = 96
    a("v_add_u32 v6, s22, v4")
    a("s_cmp_ge_u32 s3, 4")
    a("s_cbranch_scc1 L_cv_nohload")
    for rnd in range(4):
        for j in range(3):
            a("buffer_load_dwordx4 v[%d:%d], v6, s[28:31], 0 offen offset:%d" % (HR + 12 * rnd + 4 * j, HR + 12 * rnd + 4 * j + 3, 1024 * rnd + 4 * j))
    a("s_lshl_b32 s24, s20, 1")
    a("v_mov_b32 v8, s24")
    a("buffer_load_ushort v9, v8, s[32:35], 0 offen")
    a.lab("L_cv_nohload")
    a("v_lshlrev_b32 v10, 2, v0")
    a("v_subrev_u32 v10, 3, v10                 ; row0 = 4t-3")
    a("v_lshlrev_b32 v10, 10, v10")
    a("s_lshl_b32 s19, s17, 1                   ; d0*2")
    a("v_add_u32 v10, s19, v10")
    for i in range(1, 7):
        a("v_add_u32 v%d, %d, v10" % (10 + i, 1024 * i))
    KR, VR, SR_ = 20, 34, 42
    for i in range(7):
        a("buffer_load_dwordx2 v[%d:%d], v%d, s[36:39], 0 offen" % (KR + 2 * i, KR + 2 * i + 1, 10 + i))
    for i in range(4):
        a("buffer_load_dwordx2 v[%d:%d], v13, s[44:47], 0 offen offset:%d" % (VR + 2 * i, VR + 2 * i + 1, 1024 * i))
    a("s_lshl_b32 s19, s17, 3                   ; d0*8")
    a("v_mov_b32 v17, s19")
    a("buffer_load_dwordx4 v[%d:%d], v17, s[48:51], 0 offen" % (SR_, SR_ + 3))
    a("buffer_load_dwordx4 v[%d:%d], v17, s[48:51], 0 offen offset:16" % (SR_ + 4, SR_ + 7))
    a("v_lshrrev_b32 v18, 3, v0")
    a("v_mul_u32_u24 v18, 80, v18")
    a("v_and_b32 v19, 7, v0")
    a("v_lshlrev_b32 v19, 3, v19")
    a("v_sub_u32 v18, v18, v19")
    a("v_add_u32 v18, %d, v18" % (KVBASE + 80 * 31 + 56))
    a("s_cmp_ge_u32 s3, 4")
    a("s_cbranch_scc1 L_cv_nozero")
    a("v_mov_b32 v200, 0"); a("v_mov_b32 v201, 0"); a("v_mov_b32 v202, 0"); a("v_mov_b32 v203, 0")
    a("v_add_u32 v5, s21, v4")
    a("ds_write_b128 v5, v[200:203] offset:%d" % (KVBASE))
    a("ds_write_b128 v5, v[200:203] offset:%d" % (KVBASE + 1024))
    a("v_cmp_gt_u32 vcc, 27, v1")
    a("s_and_saveexec_b64 s[54:55], vcc")
    a("ds_write_b128 v5, v[200:203] offset:%d" % (KVBASE + 2048))
    a("s_mov_b64 exec, s[54:55]")
    a.lab("L_cv_nozero")
    a("s_waitcnt vmcnt(0)")
    KF, VF, SKF, P, ACC, T, KV, PK = 152, 166, 174, 182, 184, 186, 188, 196
    for pc in range(2):
        for i in range(7):
            a("v_lshlrev_b32 v%d, 16, v%d" % (KF + 2 * i, KR + 2 * i + pc))
            a("v_and_b32 v%d, 0xffff0000, v%d" % (KF + 2 * i + 1, KR + 2 * i + pc))
        for i in range(4):
            a("v_lshlrev_b32 v%d, 16, v%d" % (VF + 2 * i, VR + 2 * i + pc))
            a("v_and_b32 v%d, 0xffff0000, v%d" % (VF + 2 * i + 1, VR + 2 * i + pc))
        dw = [SR_ + 4 * pc + j for j in range(4)]
        a("v_lshlrev_b32 v%d, 16, v%d" % (SKF + 0, dw[0]))
        a("v_lshlrev_b32 v%d, 16, v%d" % (SKF + 1, dw[2]))
        a("v_and_b32 v%d, 0xffff0000, v%d" % (SKF + 2, dw[0]))
        a("v_and_b32 v%d, 0xffff0000, v%d" % (SKF + 3, dw[2]))
        a("v_lshlrev_b32 v%d, 16, v%d" % (SKF + 4, dw[1]))
        a("v_lshlrev_b32 v%d, 16, v%d" % (SKF + 5, dw[3]))
        a("v_and_b32 v%d, 0xffff0000, v%d" % (SKF + 6, dw[1]))
        a("v_and_b32 v%d, 0xffff0000, v%d" % (SKF + 7, dw[3]))
        for i in range(4):
            for t in range(4):
                a("v_pk_mul_f32 v[%d:%d], v[%d:%d], v[%d:%d]" % (P, P + 1, KF + 2 * (i + t), KF + 2 * (i + t) + 1,
                                                               SKF + 2 * (3 - t), SKF + 2 * (3 - t) + 1))
                if t == 0:
                    a("v_cvt_pk_bf16_f32 v%d, v%d, v%d" % (T, P, P + 1))
                    a("v_lshlrev_b32 v%d, 16, v%d" % (ACC, T))
                    a("v_and_b32 v%d, 0xffff0000, v%d" % (ACC + 1, T))
                else:
                    round2(a, P, P + 1, T)
                    a("v_pk_add_f32 v[%d:%d], v[%d:%d], v[%d:%d]" % (ACC, ACC + 1, ACC, ACC + 1, P, P + 1))
                    round2(a, ACC, ACC + 1, T)
            a("v_pk_mul_f32 v[%d:%d], v[%d:%d], v[%d:%d]" % (KV + 2 * i, KV + 2 * i + 1, ACC, ACC + 1, VF + 2 * i, VF + 2 * i + 1))
        for b in range(2):
            c = 2 * pc + b
            a("v_cvt_pk_bf16_f32 v%d, v%d, v%d" % (PK, KV + 6 + b, KV + 4 + b))
            a("v_cvt_pk_bf16_f32 v%d, v%d, v%d" % (PK + 1, KV + 2 + b, KV + 0 + b))
            a("v_add_u32 v19, %d, v18" % (c * CONV_WAVE_LDS))
            a("ds_write_b64 v19, v[%d:%d]" % (PK, PK + 1))
            a("s_nop 0")
    a("s_cmp_ge_u32 s3, 4")
    a("s_cbranch_scc1 L_cv_aux")
    a("v_add_u32 v10, 1, v2")
    a("v_and_b32 v11, 3, v10                    ; c")
    a("v_mov_b32 v12, %d" % CB[0])
    for c in (1, 2, 3):
        a("v_cmp_eq_u32 vcc, %d, v11" % c)
        a("v_mov_b32 v13, %d" % CB[c])
        a("s_nop 1")
        a("v_cndmask_b32 v12, v12, v13, vcc")
    a("v_lshlrev_b32 v13, 3, v3")
    a("v_add_u32 v13, v13, v10")
    a("v_sub_u32 v13, v13, v11")
    a("v_lshlrev_b32 v13, 1, v13")
    a("v_add3_u32 v20, v12, v13, s21            ; aL")
    a("v_mul_u32_u24 v13, 80, v2")
    a("v_lshlrev_b32 v14, 4, v3")
    a("v_add3_u32 v21, v13, v14, s21")
    a("v_add_u32 v21, %d, v21                   ; bL'" % KVBASE)
    a("v_lshlrev_b32 v14, 3, v3")
    a("v_sub_u32 v22, v13, v14")
    a("v_add_u32 v22, %d, v22" % (KVBASE + 80 * 31 + 56 - 48))
    a("v_add_u32 v22, s21, v22                  ; kvE'")
    a("s_add_u32 s25, s22, %d" % WS_Y2T)
    a("v_lshlrev_b32 v13, 6, v2")
    a("v_lshlrev_b32 v14, 3, v3")
    a("v_add3_u32 v23, v13, v14, s25")
    MK = 152
    for ks in range(2):
        a("v_lshlrev_b32 v13, 3, v3")
        a("v_add_u32 v13, v13, v2")
        a("v_sub_u32 v13, %d, v13               ; thr" % (16 * ks + 15))
        for dw in range(4):
            a("v_cmp_le_i32 vcc, v13, %d" % (2 * dw))
            a("v_mov_b32 v14, 0xffff")
            a("s_nop 1")
            a("v_cndmask_b32 v%d, 0, v14, vcc" % (MK + 4 * ks + dw))
            a("v_cmp_le_i32 vcc, v13, %d" % (2 * dw + 1))
            a("v_mov_b32 v14, 0xffff0000")
            a("s_nop 1")
            a("v_cndmask_b32 v15, 0, v14, vcc")
            a("v_or_b32 v%d, v%d, v15" % (MK + 4 * ks + dw, MK + 4 * ks + dw))
    for rnd in range(4):
        W = HR + 12 * rnd; V = W + 4; U = W + 8
        a("ds_write_b128 v5, v[%d:%d] offset:%d" % (W, W + 3, CB[0] + 64 + 1024 * rnd))
        a("ds_write_b128 v5, v[%d:%d] offset:%d" % (V, V + 3, CB[2] + 64 + 1024 * rnd))
        T1 = 144; T3 = 148
        a("v_alignbit_b32 v%d, v%d, v%d, 16" % (T1 + 0, W + 1, W + 0))
        a("v_alignbit_b32 v%d, v%d, v%d, 16" % (T1 + 1, W + 2, W + 1))
        a("v_alignbit_b32 v%d, v%d, v%d, 16" % (T1 + 2, W + 3, W + 2))
        a("v_alignbit_b32 v%d, v%d, v%d, 16" % (T1 + 3, V + 3, W + 3))
        a("v_alignbit_b32 v%d, v%d, v%d, 16" % (T3 + 0, V + 1, V + 0))
        a("v_alignbit_b32 v%d, v%d, v%d, 16" % (T3 + 1, V + 2, V + 1))
        a("v_alignbit_b32 v%d, v%d, v%d, 16" % (T3 + 2, V + 3, V + 2))
        a("v_alignbit_b32 v%d, v%d, v%d, 16" % (T3 + 3, U + 3, V + 3))
        a("ds_write_b128 v5, v[%d:%d] offset:%d" % (T1, T1 + 3, CB[1] + 64 + 1024 * rnd))
        a("ds_write_b128 v5, v[%d:%d] offset:%d" % (T3, T3 + 3, CB[3] + 64 + 1024 * rnd))
        a("s_nop 1")
    a("v_cmp_le_u32 vcc, 1, v1")
    a("v_cndmask_b32 v13, 1, 2, vcc")
    a("v_cmp_le_u32 vcc, 3, v1")
    a("s_nop 1")
    a("v_cndmask_b32 v13, v13, 3, vcc           ; c")
    a("v_cmp_eq_u32 vcc, 2, v13")
    a("v_cndmask_b32 v14, 0, 1, vcc")
    a("v_cmp_eq_u32 vcc, 3, v13")
    a("s_nop 1")
    a("v_cndmask_b32 v14, v14, 3, vcc           ; tri")
    a("v_sub_u32 v14, v1, v14                   ; i")
    a("v_lshlrev_b32 v15, 1, v14")
    a("v_add_u32 v16, s22, v15")
    a("v_mov_b32 v17, %d" % CB[1])
    a("v_cmp_eq_u32 vcc, 2, v13")
    a("v_mov_b32 v18, %d" % CB[2])
    a("s_nop 1")
    a("v_cndmask_b32 v17, v17, v18, vcc")
    a("v_cmp_eq_u32 vcc, 3, v13")
    a("v_mov_b32 v18, %d" % CB[3])
    a("s_nop 1")
    a("v_cndmask_b32 v17, v17, v18, vcc")
    a("v_sub_u32 v18, 32, v13")
    a("v_add_u32 v18, v18, v14")
    a("v_lshlrev_b32 v18, 1, v18")
    a("v_add3_u32 v17, v17, v18, s21")
    a("v_cmp_gt_u32 vcc, 6, v1")
    a("s_and_saveexec_b64 s[54:55], vcc")
    a("buffer_load_ushort v19, v16, s[28:31], 0 offen")
    a("s_waitcnt vmcnt(0)")
    a("ds_write_b16 v17, v19")
    a("s_mov_b64 exec, s[54:55]")
    a("v_lshlrev_b32 v9, 16, v9                 ; D as f32")
    a("s_waitcnt vmcnt(0) lgkmcnt(0)")
    a("s_barrier")
    stamp(a, 1)
    ACC0, ACC1 = 32, 48
    for i in range(32):
        a("v_mov_b32 v%d, 0" % (ACC0 + i))
    steps = [(d2, ks) for d2 in range(32) for ks in range(2)]
    SETS = [64, 80]
    def issue(idx):
        d2, ks = steps[idx]
        base = SETS[idx % 2]
        A1, A2, B1, B2 = base, base + 4, base + 8, base + 12
        m1 = 2 * d2 + 1 - ks
        a("ds_read_b64 v[%d:%d], v20 offset:%d" % (A1, A1 + 1, 32 * m1))
        a("ds_read_b64 v[%d:%d], v20 offset:%d" % (A1 + 2, A1 + 3, 32 * m1 + 8))
        a("ds_read_b64 v[%d:%d], v20 offset:%d" % (A2, A2 + 1, 32 * m1 + 2048))
        a("ds_read_b64 v[%d:%d], v20 offset:%d" % (A2 + 2, A2 + 3, 32 * m1 + 2048 + 8))
        boff = 80 * (31 - d2) + 32 * (1 - ks)
        a("ds_read_b128 v[%d:%d], v21 offset:%d" % (B2, B2 + 3, boff))
        a("ds_read_b128 v[%d:%d], v21 offset:%d" % (B1, B1 + 3, boff + 2560))
    issue(0)
    for idx in range(len(steps)):
        if idx + 1 < len(steps):
            issue(idx + 1)
            a("s_waitcnt lgkmcnt(6)")
        else:
            a("s_waitcnt lgkmcnt(0)")
        d2, ks = steps[idx]
        base = SETS[idx % 2]
        A1, A2, B1, B2 = base, base + 4, base + 8, base + 12
        if d2 == 0:
            for dw in range(4):
                a("v_and_b32 v%d, v%d, v%d" % (A1 + dw, A1 + dw, MK + 4 * ks + dw))
            a("s_nop 1")
        a("v_mfma_f32_32x32x16_bf16 v[%d:%d], v[%d:%d], v[%d:%d], v[%d:%d]" % (ACC1, ACC1 + 15, A1, A1 + 3, B1, B1 + 3, ACC1, ACC1 + 15))
        a("v_mfma_f32_32x32x16_bf16 v[%d:%d], v[%d:%d], v[%d:%d], v[%d:%d]" % (ACC0, ACC0 + 15, A1, A1 + 3, B2, B2 + 3, ACC0, ACC0 + 15))
        a("v_mfma_f32_32x32x16_bf16 v[%d:%d], v[%d:%d], v[%d:%d], v[%d:%d]" % (ACC1, ACC1 + 15, A2, A2 + 3, B2, B2 + 3, ACC1, ACC1 + 15))
    stamp(a, 2)
    for Nt in range(2):
        for j in range(4):
            a("ds_read_b64 v[%d:%d], v22 offset:%d" % (96 + 2 * (4 * Nt + j), 97 + 2 * (4 * Nt + j), 2560 * Nt + 16 * (3 - j)))
    a("s_nop 7"); a("s_nop 7")
    a("s_waitcnt lgkmcnt(0)")
    a("v_mov_b32 v10, v9")
    a("v_mov_b32 v11, v9")
    P0, P1, T = 120, 122, 124
    for Nt in range(2):
        ACCx = ACC0 if Nt == 0 else ACC1
        for j in range(4):
            dw0 = 96 + 2 * (4 * Nt + j); dw1 = dw0 + 1
            for pr, dw in ((0, dw1), (1, dw0)):
                a("v_and_b32 v%d, 0xffff0000, v%d" % (P0, dw))
                a("v_lshlrev_b32 v%d, 16, v%d" % (P0 + 1, dw))
                a("v_pk_mul_f32 v[%d:%d], v[%d:%d], v[10:11]" % (P0, P0 + 1, P0, P0 + 1))
                round2(a, P0, P0 + 1, T)
                y0 = ACCx + 4 * j + 2 * pr
                a("v_cvt_pk_bf16_f32 v%d, v%d, v%d" % (T, y0, y0 + 1))
                a("v_lshlrev_b32 v%d, 16, v%d" % (P1, T))
                a("v_and_b32 v%d, 0xffff0000, v%d" % (P1 + 1, T))
                a("v_pk_add_f32 v[%d:%d], v[%d:%d], v[%d:%d]" % (P1, P1 + 1, P1, P1 + 1, P0, P0 + 1))
                a("v_cvt_pk_bf16_f32 v%d, v%d, v%d" % (126 + pr, P1, P1 + 1))
            a("buffer_store_dwordx2 v[126:127], v23, s[40:43], 0 offen offset:%d" % (2048 * Nt + 16 * j))
            a("s_nop 0")
    stamp(a, 3)
    stamp_flush(a, 4, kern=1)
    a("s_branch L_k1_done")
    a.lab("L_cv_aux")
    a("s_waitcnt lgkmcnt(0)")
    a("s_barrier")
    import k1aux
    k1aux.gen_aux(a)
    a("s_branch L_k1_done")

def gen_k1(a, with_gemm=True):
    name = "conv_gemm1_kernel"
    kernel_header(a, name)
    a("v_readfirstlane_b32 s3, v0")
    a("s_lshr_b32 s3, s3, 6")
    a("v_and_b32 v1, 63, v0                     ; lane")
    load_ptr(a, 4, "ws")
    a("s_cmp_ge_u32 s2, %d" % K1_WGS)
    a("s_cbranch_scc1 L_k1_done")
    a("s_cmp_ge_u32 s2, %d" % N_CONV_WG)
    a("s_cbranch_scc1 L_k1_gemm1")
    gen_conv(a)
    a.lab("L_k1_gemm1")
    k1g.gen_gemm1(a)
    a.lab("L_k1_done")
    a("s_endpgm")
    return name, 208, 96
```

```python
from common import *
def gen_aux(a):
    a.cmt("---- aux: gate g")
    load_ptr(a, 6, "q"); load_ptr(a, 8, "gate_w"); load_ptr(a, 10, "w2")
    a("s_lshl_b32 s20, s2, 2")
    a("s_sub_u32 s21, s3, 4")
    a("s_add_u32 s20, s20, s21                  ; aw")
    a("v_lshlrev_b32 v2, 4, v1                  ; lane*16")
    a("s_lshl_b32 s21, s20, 12")
    a("v_add_u32 v3, s21, v2")
    a("s_waitcnt lgkmcnt(0)")
    make_srd(a, 28, 6, S * D * 2)
    make_srd(a, 32, 8, D * 2)
    make_srd(a, 36, 10, F * D * 2)
    make_srd(a, 40, 4, WS_BYTES)
    a("buffer_load_dwordx4 v[8:11], v2, s[32:35], 0 offen")
    for i in range(4):
        a("buffer_load_dwordx4 v[%d:%d], v3, s[28:31], 0 offen offset:%d" % (12 + 4 * i, 15 + 4 * i, 1024 * i))
    a("s_cmp_ge_u32 s20, 176")
    a("s_cbranch_scc1 L_aux_now2a")
    a("s_lshr_b32 s22, s20, 3                   ; ft")
    a("s_and_b32 s23, s20, 7                    ; dt")
    a("v_and_b32 v4, 7, v1")
    a("v_lshrrev_b32 v5, 3, v1")
    a("s_lshl_b32 s24, s22, 6")
    a("v_lshlrev_b32 v5, 3, v5")
    a("v_add_u32 v5, s24, v5                    ; f0")
    a("s_lshl_b32 s24, s23, 6")
    a("v_lshlrev_b32 v4, 3, v4")
    a("v_add_u32 v4, s24, v4                    ; d0")
    a("v_lshlrev_b32 v6, 10, v5")
    a("v_lshl_add_u32 v6, v4, 1, v6")
    a("v_add_u32 v7, 0x1000, v6")
    for i in range(8):
        a("buffer_load_dwordx4 v[%d:%d], v%d, s[36:39], 0 offen offset:%d" % (64 + 4 * i, 67 + 4 * i, 6 if i < 4 else 7, 1024 * (i % 4)))
    a("s_movk_i32 s25, 2816")
    a("v_mul_lo_u32 v6, v4, s25")
    a("v_lshl_add_u32 v6, v5, 1, v6")
    a("v_add_u32 v6, 0x%x, v6                   ; w2T store offset" % WS_W2T)
    a("s_waitcnt vmcnt(8)")
    a("s_branch L_aux_go")
    a.lab("L_aux_now2a")
    a("s_waitcnt vmcnt(0)")
    a.lab("L_aux_go")
    WF, XF, P, ACC, T = 32, 40, 42, 44, 46
    for j in range(4):
        a("v_lshlrev_b32 v%d, 16, v%d" % (WF + 2 * j, 8 + j))
        a("v_and_b32 v%d, 0xffff0000, v%d" % (WF + 2 * j + 1, 8 + j))
    a("s_mov_b32 s52, 0x3fb8aa3b                ; log2(e)")
    for i in range(4):
        for j in range(4):
            a("v_lshlrev_b32 v%d, 16, v%d" % (XF, 12 + 4 * i + j))
            a("v_and_b32 v%d, 0xffff0000, v%d" % (XF + 1, 12 + 4 * i + j))
            a("v_pk_mul_f32 v[%d:%d], v[%d:%d], v[%d:%d]" % (P, P + 1, XF, XF + 1, WF + 2 * j, WF + 2 * j + 1))
            round2(a, P, P + 1, T)
            if j == 0:
                a("v_mov_b32 v%d, v%d" % (ACC, P)); a("v_mov_b32 v%d, v%d" % (ACC + 1, P + 1))
            else:
                a("v_pk_add_f32 v[%d:%d], v[%d:%d], v[%d:%d]" % (ACC, ACC + 1, ACC, ACC + 1, P, P + 1))
        a("v_add_f32 v%d, v%d, v%d" % (ACC, ACC, ACC + 1))
        for ctl in ["quad_perm:[1,0,3,2]", "quad_perm:[2,3,0,1]", "row_half_mirror", "row_mirror"]:
            a("s_nop 1")
            a("v_add_f32_dpp v%d, v%d, v%d %s row_mask:0xf bank_mask:0xf" % (ACC, ACC, ACC, ctl))
        a("s_nop 1")
        a("v_readlane_b32 s56, v%d, 0" % ACC)
        a("v_readlane_b32 s57, v%d, 16" % ACC)
        a("v_readlane_b32 s58, v%d, 32" % ACC)
        a("v_readlane_b32 s59, v%d, 48" % ACC)
        a("s_nop 1")
        a("v_mov_b32 v%d, s56" % T)
        a("v_add_f32 v%d, s57, v%d" % (T, T))
        a("v_add_f32 v%d, s58, v%d" % (T, T))
        a("v_add_f32 v%d, s59, v%d" % (T, T))
        a("v_cvt_pk_bf16_f32 v%d, v%d, v%d" % (T, T, T))
        a("v_lshlrev_b32 v%d, 16, v%d" % (T, T))
        a("v_mul_f32 v%d, s52, v%d" % (T, T))
        a("v_exp_f32 v%d, -v%d" % (T, T))
        a("s_nop 0")
        a("v_add_f32 v%d, 1.0, v%d" % (T, T))
        a("v_rcp_f32 v%d, v%d" % (T, T))
        a("s_nop 0")
        a("v_cvt_pk_bf16_f32 v%d, v%d, v%d" % (T, T, T))
        a("v_lshlrev_b32 v%d, 16, v%d" % (T, T))
        a("v_mov_b32 v%d, v%d" % (48 + i, T))
    a("s_lshl_b32 s21, s20, 4")
    a("s_add_u32 s21, s21, %d" % WS_G)
    a("v_mov_b32 v2, s21")
    a("v_cmp_eq_u32 vcc, 0, v1")
    a("s_and_saveexec_b64 s[54:55], vcc")
    a("buffer_store_dwordx4 v[48:51], v2, s[40:43], 0 offen")
    a("s_mov_b64 exec, s[54:55]")
    a("s_cmp_ge_u32 s20, 176")
    a("s_cbranch_scc1 L_aux_done")
    a("s_mov_b32 s44, 0x05040100")
    a("s_mov_b32 s45, 0x07060302")
    a("s_movk_i32 s27, 2816")
    a("s_waitcnt vmcnt(0)")
    for c in range(8):
        for jj in range(4):
            src_lo = 64 + 4 * (2 * jj) + c // 2
            src_hi = 64 + 4 * (2 * jj + 1) + c // 2
            a("v_perm_b32 v%d, v%d, v%d, s%d" % (100 + jj, src_hi, src_lo, 44 + (c & 1)))
        a("buffer_store_dwordx4 v[100:103], v6, s[40:43], 0 offen")
        if c != 7:
            a("v_add_u32 v6, s27, v6")
        a("s_nop 1")
    a.lab("L_aux_done")
```

```python
from common import *

ROWB = 144
ARS = 448
A_BYTES = 64 * ARS
BOFF = A_BYTES
G1_BUF = A_BYTES + 128 * ROWB
NBUF = 3
G1_LDS = NBUF * G1_BUF
NCH = 8
NSET = 3
N_CONV_WG = 128

def mish_pair(a, X, BP, T, W0, W1, consts):
    sNL2E, s2L2E, sLN2 = consts
    round2(a, X, X + 1, T)
    a("v_pk_add_f32 v[%d:%d], v[%d:%d], v[%d:%d]" % (X, X + 1, X, X + 1, BP, BP + 1))
    round2(a, X, X + 1, T)
    a("v_mul_f32_e64 v%d, s%d, |v%d|" % (W0, sNL2E, X))
    a("v_mul_f32_e64 v%d, s%d, |v%d|" % (W0 + 1, sNL2E, X + 1))
    a("v_exp_f32 v%d, v%d" % (W0, W0))
    a("v_exp_f32 v%d, v%d" % (W0 + 1, W0 + 1))
    a("s_nop 0")
    round2(a, W0, W0 + 1, T)
    a("v_pk_add_f32 v[%d:%d], v[%d:%d], 1.0" % (W1, W1 + 1, W0, W0 + 1))
    a("v_pk_add_f32 v[%d:%d], v[%d:%d], -1.0" % (T + 1, T + 2, W1, W1 + 1))
    a("v_pk_add_f32 v[%d:%d], v[%d:%d], v[%d:%d] neg_lo:[0,1] neg_hi:[0,1]" % (W0, W0 + 1, W0, W0 + 1, T + 1, T + 2))
    a("v_log_f32 v%d, v%d" % (W1, W1))
    a("v_log_f32 v%d, v%d" % (W1 + 1, W1 + 1))
    a("s_nop 0")
    a("v_pk_fma_f32 v[%d:%d], v[%d:%d], s[%d:%d], v[%d:%d] op_sel_hi:[1,0,1]" % (W0, W0 + 1, W1, W1 + 1, sLN2, sLN2 + 1, W0, W0 + 1))
    round2(a, W0, W0 + 1, T)
    a("v_max_f32 v%d, 0, v%d" % (W1, X))
    a("v_max_f32 v%d, 0, v%d" % (W1 + 1, X + 1))
    a("v_pk_add_f32 v[%d:%d], v[%d:%d], v[%d:%d]" % (W0, W0 + 1, W0, W0 + 1, W1, W1 + 1))
    round2(a, W0, W0 + 1, T)
    a("v_pk_mul_f32 v[%d:%d], v[%d:%d], s[%d:%d] op_sel_hi:[1,0]" % (W0, W0 + 1, W0, W0 + 1, s2L2E, s2L2E + 1))
    a("v_exp_f32 v%d, v%d" % (W0, W0))
    a("v_exp_f32 v%d, v%d" % (W0 + 1, W0 + 1))
    a("s_nop 0")
    a("v_pk_add_f32 v[%d:%d], v[%d:%d], 1.0" % (W0, W0 + 1, W0, W0 + 1))
    a("v_rcp_f32 v%d, v%d" % (W0, W0))
    a("v_rcp_f32 v%d, v%d" % (W0 + 1, W0 + 1))
    a("s_nop 0")
    a("v_pk_fma_f32 v[%d:%d], v[%d:%d], -2.0, 1.0" % (W0, W0 + 1, W0, W0 + 1))
    round2(a, W0, W0 + 1, T)
    a("v_pk_mul_f32 v[%d:%d], v[%d:%d], v[%d:%d]" % (X, X + 1, X, X + 1, W0, W0 + 1))

def gen_gemm1(a):
    a.cmt("================= gemm1 workgroups =================")
    stamp(a, 0)
    load_ptr(a, 6, "q"); load_ptr(a, 8, "b1"); load_ptr(a, 10, "w1")
    a("s_sub_u32 s20, s2, %d" % N_CONV_WG)
    a("s_and_b32 s21, s20, 7")
    a("s_lshl_b32 s21, s21, 1")
    a("s_lshr_b32 s22, s20, 3")
    a("s_and_b32 s45, s22, 1")
    a("s_add_u32 s21, s21, s45                  ; s tile = (g%8)*2 + ((g>>3)&1)")
    a("s_lshr_b32 s22, s20, 4                   ; f tile = g>>4")
    a("s_mul_i32 s23, s22, 192                  ; f0")
    a("s_lshl_b32 s24, s21, 7                   ; s0")
    a("s_lshr_b32 s25, s3, 2                    ; fh")
    a("s_and_b32 s26, s3, 3                     ; sb")
    a("v_and_b32 v2, 31, v1")
    a("v_lshrrev_b32 v3, 5, v1")
    a("v_lshrrev_b32 v4, 3, v0")
    a("v_and_b32 v5, 7, v0")
    a("v_lshlrev_b32 v6, 4, v5                  ; j*16")
    a("s_waitcnt lgkmcnt(0)")
    make_srd(a, 28, 6, S * D * 2)
    make_srd(a, 32, 8, F * 2)
    make_srd(a, 36, 10, D * F * 2)
    make_srd(a, 40, 4, WS_BYTES)
    a("s_movk_i32 s44, 2731")
    a("s_movk_i32 s46, 2752")
    a("s_lshl_b32 s47, s23, 1                   ; f0*2")
    for i in range(3):
        a("v_add_u32 v7, %d, v0" % (512 * i))
        a("v_mul_lo_u32 v19, v7, s44")
        a("v_lshrrev_b32 v19, 16, v19               ; k")
        a("v_mul_u32_u24 v17, 24, v19")
        a("v_sub_u32 v17, v7, v17                   ; j")
        a("v_mul_lo_u32 v%d, v19, s46" % (8 + i))
        a("v_lshl_add_u32 v%d, v17, 4, v%d" % (8 + i, 8 + i))
        a("v_add_u32 v%d, s47, v%d" % (8 + i, 8 + i))
        a("v_mul_u32_u24 v19, %d, v19" % ARS)
        a("v_lshl_add_u32 v%d, v17, 4, v19" % (180 + i))
    a("v_add_u32 v7, s24, v4")
    a("v_lshlrev_b32 v7, 10, v7")
    a("v_add_u32 v11, v7, v6")
    a("v_add_u32 v12, 0x10000, v11")
    a("v_mul_u32_u24 v13, %d, v4" % ROWB)
    a("v_add_u32 v13, v13, v6")
    a("v_add_u32 v13, %d, v13                   ; B lds write addr (buffer 0)" % BOFF)
    a("v_and_b32 v7, 15, v1")
    a("v_lshrrev_b32 v14, 2, v7                 ; r")
    a("v_lshl_add_u32 v14, v3, 3, v14           ; 8g+r")
    a("v_mul_u32_u24 v14, %d, v14" % ARS)
    a("v_and_b32 v7, 3, v7")
    a("v_lshlrev_b32 v7, 3, v7                  ; 4c*2")
    a("v_add_u32 v14, v14, v7")
    a("v_lshrrev_b32 v7, 4, v1")
    a("v_and_b32 v7, 1, v7")
    a("v_lshl_add_u32 v14, v7, 5, v14           ; + 16*(G&1)*2")
    a("s_mul_i32 s27, s25, 192")
    a("v_add_u32 v14, s27, v14")
    a("s_lshl_b32 s27, s26, 5")
    a("v_add_u32 v15, s27, v2")
    a("v_mul_u32_u24 v15, %d, v15" % ROWB)
    a("v_lshlrev_b32 v7, 4, v3")
    a("v_add_u32 v15, v15, v7")
    a("v_add_u32 v15, %d, v15                   ; B frag base buf0" % BOFF)
    a("s_add_u32 s27, s24, s27")
    a("v_add_u32 v16, s27, v2")
    a("s_movk_i32 s44, 2816")
    a("v_mul_lo_u32 v16, v16, s44")
    a("s_mul_i32 s45, s25, 96")
    a("s_add_u32 s45, s45, s23                  ; fbase")
    a("v_lshlrev_b32 v7, 2, v3")
    a("v_add_u32 v7, s45, v7")
    a("v_lshlrev_b32 v17, 1, v7")
    a("v_add_u32 v16, v16, v17")
    a("v_add_u32 v16, 0x%x, v16" % WS_ACT)
    for fb in range(3):
        for j in range(4):
            a("buffer_load_dwordx2 v[%d:%d], v17, s[32:35], 0 offen offset:%d" % (20 + 2 * (4 * fb + j), 21 + 2 * (4 * fb + j), 64 * fb + 16 * j))
    NB = 12
    ST = [44 + 20 * i for i in range(NSET)]
    FR = [104, 120]
    ACC = 136
    ACC = 136
    issued = []
    def issue(c):
        st = ST[c % NSET]
        a("s_mov_b32 s48, %d" % (c * 64 * 2752))
        for i in range(3):
            a("buffer_load_dwordx4 v[%d:%d], v%d, s[36:39], s48 offen" % (st + 4 * i, st + 4 * i + 3, 8 + i))
        for i, va in enumerate((11, 12)):
            a("buffer_load_dwordx4 v[%d:%d], v%d, s[28:31], 0 offen offset:%d" % (st + 12 + 4 * i, st + 12 + 4 * i + 3, va, 128 * c))
        issued.append(c)
    def wait_chunk(c):
        a("s_waitcnt vmcnt(%d)" % (5 * (len(issued) - 1 - issued.index(c))))
    def write_lds(c):
        st = ST[c % NSET]; b = (c % NBUF) * G1_BUF
        for i in range(3):
            if b + 0 > 65535 - 16:
                a("v_add_u32 v19, %d, v%d" % (b, 190 + i)); a("ds_write_b128 v19, v[%d:%d]" % (st + 4 * i, st + 4 * i + 3))
            else:
                a("ds_write_b128 v%d, v[%d:%d] offset:%d" % (190 + i, st + 4 * i, st + 4 * i + 3, b))
        for i in range(2):
            off = b + 64 * i * ROWB
            if off > 65535:
                a("v_add_u32 v19, %d, v13" % off); a("ds_write_b128 v19, v[%d:%d]" % (st + 12 + 4 * i, st + 12 + 4 * i + 3))
            else:
                a("ds_write_b128 v13, v[%d:%d] offset:%d" % (st + 12 + 4 * i, st + 12 + 4 * i + 3, off))
    for i in range(3):
        a("v_mov_b32 v%d, v%d" % (190 + i, 180 + i))
    for b in range(NBUF):
        a("v_add_u32 v%d, %d, v14" % (184 + b, b * G1_BUF))
        a("v_add_u32 v%d, %d, v15" % (187 + b, b * G1_BUF))
    for i in range(48):
        a("v_mov_b32 v%d, 0" % (ACC + i))
    def frag_reads(c, ks):
        g = 4 * c + ks
        fr = FR[g % 2]; b = c % NBUF
        for fb in range(3):
            a("ds_read_b64_tr_b16 v[%d:%d], v%d offset:%d" % (fr + 4 * fb, fr + 4 * fb + 1, 184 + b, 16 * ks * ARS + 64 * fb))
            a("ds_read_b64_tr_b16 v[%d:%d], v%d offset:%d" % (fr + 4 * fb + 2, fr + 4 * fb + 3, 184 + b, (16 * ks + 4) * ARS + 64 * fb))
        a("ds_read_b128 v[%d:%d], v%d offset:%d" % (fr + 12, fr + 15, 187 + b, 32 * ks))
    for c in range(NSET):
        issue(c)
    for c in range(2):
        wait_chunk(c)
        write_lds(c)
        if c + NSET < NCH:
            issue(c + NSET)
    a("s_waitcnt lgkmcnt(0)")
    a("s_barrier")
    stamp(a, 1)
    frag_reads(0, 0)
    for c in range(NCH):
        if c + 2 < NCH:
            wait_chunk(c + 2)
            write_lds(c + 2)
            if c + 2 + NSET < NCH:
                issue(c + 2 + NSET)
        for ks in range(4):
            if ks < 3:
                frag_reads(c, ks + 1)
            elif c + 1 < NCH:
                frag_reads(c + 1, 0)
            last = (ks == 3 and c + 1 >= NCH)
            a("s_waitcnt lgkmcnt(%d)" % (0 if last else 7))
            fr = FR[(4 * c + ks) % 2]
            for fb in range(3):
                a("v_mfma_f32_32x32x16_bf16 v[%d:%d], v[%d:%d], v[%d:%d], v[%d:%d]" % (
                    ACC + 16 * fb, ACC + 16 * fb + 15, fr + 4 * fb, fr + 4 * fb + 3, fr + 12, fr + 15, ACC + 16 * fb, ACC + 16 * fb + 15))
        if c + 1 < NCH:
            a("s_barrier")
    stamp(a, 2)
    a("s_nop 7"); a("s_nop 7")
    a("s_mov_b32 s46, 0xbfb8aa3b                ; -log2(e)")
    a("s_mov_b32 s48, 0x4038aa3b                ; 2*log2(e)")
    a("s_mov_b32 s49, 0x4038aa3b")
    a("s_mov_b32 s50, 0x3f317218                ; ln2")
    a("s_mov_b32 s51, 0x3f317218")
    BP, W0, W1, T = 44, 46, 48, 51
    for fb in range(3):
        a("s_mul_i32 s52, s25, 96")
        a("s_add_u32 s52, s52, s23")
        a("s_add_u32 s52, s52, %d" % (32 * fb))
        a("s_cmp_ge_u32 s52, %d" % FP)
        a("s_cbranch_scc1 L_g1_skip%d" % fb)
        for j in range(4):
            bdw = 20 + 2 * (4 * fb + j)
            for pr in range(2):
                X = ACC + 16 * fb + 4 * j + 2 * pr
                a("v_lshlrev_b32 v%d, 16, v%d" % (BP, bdw + pr))
                a("v_and_b32 v%d, 0xffff0000, v%d" % (BP + 1, bdw + pr))
                mish_pair(a, X, BP, T, W0, W1, (46, 48, 50))
                a("v_cvt_pk_bf16_f32 v%d, v%d, v%d" % (54 + pr, X, X + 1))
            a("buffer_store_dwordx2 v[54:55], v16, s[40:43], 0 offen offset:%d" % (64 * fb + 16 * j))
            a("s_nop 0")
        a.lab("L_g1_skip%d" % fb)
    stamp(a, 3)
    stamp_flush(a, 4, kern=1)
```

```python
from common import *

K2_WGS = 256
K2_BLOCK = 256
ROWB = 144
BOFF = 64 * ROWB
BUF = 128 * ROWB
K2_LDS = 3 * BUF
NCH = FP // 64

def gen_k2(a):
    name = "gemm2_kernel"
    kernel_header(a, name)
    a("v_readfirstlane_b32 s3, v0")
    a("s_lshr_b32 s3, s3, 6")
    a("v_and_b32 v1, 63, v0")
    load_ptr(a, 4, "ws"); load_ptr(a, 6, "q"); load_ptr(a, 8, "out")
    a("s_cmp_ge_u32 s2, %d" % K2_WGS)
    a("s_cbranch_scc1 L_k2_done")
    stamp(a, 0)
    a("s_lshr_b32 s20, s2, 5                    ; d tile")
    a("s_and_b32 s21, s2, 7")
    a("s_lshl_b32 s21, s21, 2")
    a("s_lshr_b32 s45, s2, 3")
    a("s_and_b32 s45, s45, 3")
    a("s_add_u32 s21, s21, s45                  ; s tile = (wg%8)*4 + ((wg>>3)&3)")
    a("s_lshl_b32 s22, s20, 6                   ; d0")
    a("s_lshl_b32 s23, s21, 6                   ; s0")
    a("s_lshr_b32 s24, s3, 1                    ; wd")
    a("s_and_b32 s25, s3, 1                     ; wsb")
    a("v_and_b32 v2, 31, v1")
    a("v_lshrrev_b32 v3, 5, v1")
    a("v_lshrrev_b32 v4, 3, v0                  ; rowt")
    a("v_and_b32 v5, 7, v0")
    a("v_lshlrev_b32 v6, 4, v5")
    a("s_waitcnt lgkmcnt(0)")
    make_srd(a, 28, 6, S * D * 2)
    make_srd(a, 32, 8, S * D * 2)
    make_srd(a, 40, 4, WS_BYTES)
    a("s_movk_i32 s44, 2816")
    a("v_add_u32 v7, s22, v4")
    a("v_mul_lo_u32 v7, v7, s44")
    a("v_add_u32 v7, v7, v6")
    a("v_add_u32 v8, 0x%x, v7" % WS_W2T)
    a("v_add_u32 v9, %d, v8" % (32 * 2816))
    a("v_add_u32 v7, s23, v4")
    a("v_mul_lo_u32 v7, v7, s44")
    a("v_add_u32 v7, v7, v6")
    a("v_add_u32 v10, 0x%x, v7" % WS_ACT)
    a("v_add_u32 v11, %d, v10" % (32 * 2816))
    a("v_mul_u32_u24 v12, %d, v4" % ROWB)
    a("v_add_u32 v12, v12, v6")
    a("s_lshl_b32 s26, s24, 5")
    a("v_add_u32 v13, s26, v2")
    a("v_mul_u32_u24 v13, %d, v13" % ROWB)
    a("v_lshlrev_b32 v7, 4, v3")
    a("v_add_u32 v13, v13, v7")
    a("s_lshl_b32 s27, s25, 5")
    a("v_add_u32 v14, s27, v2")
    a("v_mul_u32_u24 v14, %d, v14" % ROWB)
    a("v_add_u32 v14, v14, v7")
    a("v_add_u32 v14, %d, v14                   ; B frag base" % BOFF)
    a("s_add_u32 s27, s23, s27")
    a("v_add_u32 v17, s27, v2                   ; srow")
    a("s_add_u32 s26, s22, s26")
    a("v_lshlrev_b32 v7, 2, v3")
    a("v_add_u32 v7, s26, v7                    ; dcol")
    a("v_lshlrev_b32 v15, 10, v17")
    a("v_lshl_add_u32 v15, v7, 1, v15")
    a("v_lshlrev_b32 v16, 12, v7")
    a("v_lshl_add_u32 v16, v17, 1, v16")
    a("v_add_u32 v16, 0x%x, v16                 ; y2T base" % WS_Y2T)
    a("v_lshlrev_b32 v18, 2, v17")
    a("v_add_u32 v18, 0x%x, v18                 ; g offset" % WS_G)
    for j in range(4):
        for i in range(4):
            a("s_mov_b32 s45, %d" % ((8 * j + i) * 4096))
            a("buffer_load_ushort v%d, v16, s[40:43], s45 offen" % (20 + 4 * j + i))
    for j in range(4):
        a("buffer_load_dwordx2 v[%d:%d], v15, s[28:31], 0 offen offset:%d" % (36 + 2 * j, 37 + 2 * j, 16 * j))
    a("buffer_load_dword v44, v18, s[40:43], 0 offen")
    NSET = 6
    ST = [48 + 16 * i for i in range(NSET)]
    def issue_loads(c):
        st = ST[c % NSET]
        a("buffer_load_dwordx4 v[%d:%d], v8, s[40:43], 0 offen offset:%d" % (st, st + 3, 128 * c))
        a("buffer_load_dwordx4 v[%d:%d], v9, s[40:43], 0 offen offset:%d" % (st + 4, st + 7, 128 * c))
        a("buffer_load_dwordx4 v[%d:%d], v10, s[40:43], 0 offen offset:%d" % (st + 8, st + 11, 128 * c))
        a("buffer_load_dwordx4 v[%d:%d], v11, s[40:43], 0 offen offset:%d" % (st + 12, st + 15, 128 * c))
    def write_lds(c):
        st = ST[c % NSET]; b = (c % 3) * BUF
        a("ds_write_b128 v12, v[%d:%d] offset:%d" % (st, st + 3, b))
        a("ds_write_b128 v12, v[%d:%d] offset:%d" % (st + 4, st + 7, b + 32 * ROWB))
        a("ds_write_b128 v12, v[%d:%d] offset:%d" % (st + 8, st + 11, b + BOFF))
        a("ds_write_b128 v12, v[%d:%d] offset:%d" % (st + 12, st + 15, b + BOFF + 32 * ROWB))
    FR = [48 + 16 * NSET, 56 + 16 * NSET]
    ACC = 64 + 16 * NSET
    for i in range(16):
        a("v_mov_b32 v%d, 0" % (ACC + i))
    def frag_reads(c, ks):
        g = 4 * c + ks
        fr = FR[g % 2]; b = (c % 3) * BUF
        a("ds_read_b128 v[%d:%d], v13 offset:%d" % (fr, fr + 3, b + 32 * ks))
        a("ds_read_b128 v[%d:%d], v14 offset:%d" % (fr + 4, fr + 7, b + 32 * ks))
    issued = []
    def issue(c):
        issue_loads(c); issued.append(c)
    def wait_chunk(c):
        a("s_waitcnt vmcnt(%d)" % (4 * (len(issued) - 1 - issued.index(c))))
    for c in range(NSET):
        issue(c)
    for c in range(2):
        wait_chunk(c)
        write_lds(c)
        if c + NSET < NCH:
            issue(c + NSET)
    a("s_waitcnt lgkmcnt(0)")
    a("s_barrier")
    stamp(a, 1)
    frag_reads(0, 0)
    for c in range(NCH):
        if c + 2 < NCH:
            wait_chunk(c + 2)
            write_lds(c + 2)
            if c + 2 + NSET < NCH:
                issue(c + 2 + NSET)
        for ks in range(4):
            if ks < 3:
                frag_reads(c, ks + 1)
            elif c + 1 < NCH:
                frag_reads(c + 1, 0)
            nw = 4 if (c + 2 < NCH and ks == 0) else 0
            last = (ks == 3 and c + 1 >= NCH)
            a("s_waitcnt lgkmcnt(%d)" % (0 if last else 2))
            fr = FR[(4 * c + ks) % 2]
            a("v_mfma_f32_32x32x16_bf16 v[%d:%d], v[%d:%d], v[%d:%d], v[%d:%d]" % (ACC, ACC + 15, fr, fr + 3, fr + 4, fr + 7, ACC, ACC + 15))
        if c + 1 < NCH:
            a("s_barrier")
    stamp(a, 2)
    a("s_nop 7"); a("s_nop 7")
    G, OMG = 46, 48
    a("v_mov_b32 v%d, v44" % G); a("v_mov_b32 v%d, v44" % (G + 1))
    a("v_sub_f32 v%d, 1.0, v44" % OMG)
    a("v_cvt_pk_bf16_f32 v50, v%d, v%d" % (OMG, OMG))
    a("v_lshlrev_b32 v%d, 16, v50" % OMG)
    a("v_mov_b32 v%d, v%d" % (OMG + 1, OMG))
    Y, Q, T = 52, 54, 56
    for j in range(4):
        for pr in range(2):
            a("v_lshlrev_b32 v%d, 16, v%d" % (Y, 20 + 4 * j + 2 * pr))
            a("v_lshlrev_b32 v%d, 16, v%d" % (Y + 1, 20 + 4 * j + 2 * pr + 1))
            a("v_lshlrev_b32 v%d, 16, v%d" % (Q, 36 + 2 * j + pr))
            a("v_and_b32 v%d, 0xffff0000, v%d" % (Q + 1, 36 + 2 * j + pr))
            a("v_pk_mul_f32 v[%d:%d], v[%d:%d], v[%d:%d]" % (Y, Y + 1, Q, Q + 1, Y, Y + 1))
            round2(a, Y, Y + 1, T)
            a("v_pk_mul_f32 v[%d:%d], v[%d:%d], v[%d:%d]" % (Y, Y + 1, G, G + 1, Y, Y + 1))
            round2(a, Y, Y + 1, T)
            X = ACC + 4 * j + 2 * pr
            round2(a, X, X + 1, T)
            a("v_pk_mul_f32 v[%d:%d], v[%d:%d], v[%d:%d]" % (X, X + 1, OMG, OMG + 1, X, X + 1))
            round2(a, X, X + 1, T)
            a("v_pk_add_f32 v[%d:%d], v[%d:%d], v[%d:%d]" % (X, X + 1, X, X + 1, Y, Y + 1))
            a("v_cvt_pk_bf16_f32 v%d, v%d, v%d" % (58 + pr, X, X + 1))
        a("buffer_store_dwordx2 v[58:59], v15, s[32:35], 0 offen offset:%d" % (16 * j))
        a("s_nop 0")
    stamp(a, 3)
    stamp_flush(a, 4, kern=2)
    a.lab("L_k2_done")
    a("s_endpgm")
    return name, (208 if STAMP else 184), 96
```
